```python
import torch

def _softmax(x, axis=-1):
    return torch.softmax(x, dim=axis)
def _gelu(x):
    return torch.nn.functional.gelu(x, approximate="tanh")
def _silu(x):
    return torch.nn.functional.silu(x)
def _sigmoid(x):
    return torch.sigmoid(x)
def _layernorm(x, axis=-1, eps=1e-5):
    m = x.mean(dim=axis, keepdim=True)
    v = x.var(dim=axis, keepdim=True, unbiased=False)
    return (x - m) / torch.sqrt(v + eps)
def _scatter_add(tgt, idx, src, axis=0):
    return tgt.clone().index_add_(axis, idx, src)
def _segment_sum(src, seg, n):
    out = torch.zeros((n,) + src.shape[1:], dtype=src.dtype)
    return out.index_add_(0, seg, src)
def _pad(x, pw):
    flat = tuple(v for pair in reversed(pw) for v in pair)
    return torch.nn.functional.pad(x, flat)

kernel_name = 'gated_mix__mha_block__swiglu_ffn__prompt'

def setup_inputs():

    _w = (lambda a: (lambda t: t.to(torch.bfloat16) if t.is_floating_point() else t)(torch.as_tensor(a)))
    def _A_setup():
        B, S, D, H = 1, 2048, 512, 32
        return {
            "x": _w((lambda *s: torch.randn(*s, dtype=torch.bfloat16) * 0.05)(B, S, D)),
            "wqkv": _w((lambda *s: torch.randn(*s, dtype=torch.bfloat16) * 0.8)(D, 3 * D)),
            "wo": _w((lambda *s: torch.randn(*s, dtype=torch.bfloat16) * 0.05)(D, D)),
        }
    _A_in = _A_setup()

    def _B_setup():
        B, S, D, F = 1, 2048, 512, 1376
        return {
            "x": _w((lambda *s: torch.randn(*s, dtype=torch.bfloat16) * 0.05)(B, S, D)),
            "w_gate": _w((lambda *s: torch.randn(*s, dtype=torch.bfloat16) * 0.1)(D, F)),
            "w_up": _w((lambda *s: torch.randn(*s, dtype=torch.bfloat16) * 0.1)(D, F)),
            "w_down": _w((lambda *s: torch.randn(*s, dtype=torch.bfloat16) * 0.1)(F, D)),
        }
    _B_in = _B_setup()

    return {
        "A_x": _A_in["x"],
        "A_wqkv": _A_in["wqkv"],
        "A_wo": _A_in["wo"],
        "B_x": _B_in["x"],
        "B_w_gate": _B_in["w_gate"],
        "B_w_up": _B_in["w_up"],
        "B_w_down": _B_in["w_down"],
        "gate_w": _w((lambda *s: torch.randn(*s, dtype=torch.bfloat16) * 0.05)(512) * 16.0),
    }

def reference(A_x, A_wqkv, A_wo, B_x, B_w_gate, B_w_up, B_w_down, gate_w):
    def _A_ref(x, wqkv, wo):
        B, S, D = x.shape
        H = 32
        Dh = D // H
        qkv = (lambda x, *d: x.permute(*d))((x @ wqkv).reshape(B, S, 3, H, Dh), 2, 0, 3, 1, 4)
        q, k, v = qkv[0], qkv[1], qkv[2]
        scores = torch.einsum("bhqd,bhkd->bhqk", q, k) * (Dh ** -0.5)
        p = _softmax(scores, axis=-1)
        o = torch.einsum("bhqk,bhkd->bhqd", p, v)
        return (lambda x, *d: x.permute(*d))(o, 0, 2, 1, 3).reshape(B, S, D) @ wo

    def _B_ref(x, w_gate, w_up, w_down):
        g = _silu(x @ w_gate)
        u = x @ w_up
        return (g * u) @ w_down

    x = A_x
    g = _sigmoid((x * gate_w).sum(-1, keepdims=True))
    a = _A_ref(x, A_wqkv, A_wo)
    b = _B_ref(x, B_w_gate, B_w_up, B_w_down)
    return g * a + (1 - g) * b
```

```python
class Asm:
    def __init__(self):
        self.lines = []
        self.uid = 0
    def __call__(self, s=""):
        for l in s.split("\n"):
            self.lines.append(l)
    def label(self, name): self.lines.append(f"{name}:")
    def newlabel(self, p="L"):
        self.uid += 1
        return f"{p}_{self.uid}"
    def text(self): return "\n".join(self.lines) + "\n"
def vr(a, n=1): return f"v{a}" if n == 1 else f"v[{a}:{a+n-1}]"
def sr(a, n=1): return f"s{a}" if n == 1 else f"s[{a}:{a+n-1}]"
def kernel_begin(A, name):
    A(f".text\n.globl {name}\n.p2align 8\n.type {name},@function\n{name}:")
def kernel_desc(name, nvgpr, nsgpr=96, accum=None):
    accum = accum or ((nvgpr + 3) // 4 * 4)
    return f""".section .rodata,"a"
.p2align 6
.amdhsa_kernel {name}
  .amdhsa_next_free_vgpr {nvgpr}
  .amdhsa_next_free_sgpr {nsgpr}
  .amdhsa_accum_offset {accum}
  .amdhsa_group_segment_fixed_size 0
  .amdhsa_kernarg_size 88
  .amdhsa_user_sgpr_count 2
  .amdhsa_user_sgpr_kernarg_segment_ptr 1
  .amdhsa_system_sgpr_workgroup_id_x 1
  .amdhsa_float_denorm_mode_32 3
.end_amdhsa_kernel
"""
def srd(A, d, base_s, nbytes, add=0):
    if add:
        A(f"  s_add_u32 s{d}, s{base_s}, {hex(add)}")
        A(f"  s_addc_u32 s{d+1}, s{base_s+1}, 0")
    else:
        A(f"  s_mov_b32 s{d}, s{base_s}")
        A(f"  s_mov_b32 s{d+1}, s{base_s+1}")
    A(f"  s_mov_b32 s{d+2}, {hex(nbytes)}")
    A(f"  s_mov_b32 s{d+3}, 0x20000")
MFMA = "v_mfma_f32_32x32x16_bf16"
```

```python
from asmlib import *
KA_AX, KA_WQKV, KA_WO, KA_BX, KA_WG, KA_WU, KA_WD, KA_GW, KA_OUT, KA_DBG, KA_WS = 0, 8, 16, 24, 32, 40, 48, 56, 64, 72, 80
WS_QF = 0x000000
WS_KF = 0x200000
WS_VF = 0x400000
WS_OF = 0x600000
WS_HF = 0x800000
HF_BYTES = 64*86*1024
WS_G  = 0xE00000
WS_BF = 0xE10000
WS_FLAG = 0x1400000
WS_TOTAL = 0x1500000
QSCALE = 0.25 * 1.4426950408889634
import struct
def f2u(x): return struct.unpack("<I", struct.pack("<f", x))[0]
```

```python
from common import *
NST = 5
STG = 28672
def gen_k1(A, name="k1_kernel"):
    kernel_begin(A, name)
    A(f"""
  s_cmp_ge_u32 s2, 256
  s_cbranch_scc1 {name}_end
  s_load_dwordx4 s[4:7], s[0:1], {KA_AX}       ; A_x, wqkv
  s_load_dwordx2 s[8:9], s[0:1], {KA_WS}
  s_load_dwordx2 s[10:11], s[0:1], {KA_GW}
  v_lshrrev_b32 v1, 6, v0
  v_and_b32 v0, 63, v0
  s_and_b32 s25, s2, 7
  s_lshr_b32 s27, s2, 3
  v_readfirstlane_b32 s24, v1
  s_and_b32 s26, s25, 3
  s_lshl_b32 s26, s26, 2
  s_and_b32 s27, s27, 3
  s_add_u32 s26, s26, s27                      ; rb = (j&3)*4 + ((c>>3)&3)
  s_lshr_b32 s27, s25, 2
  s_lshl_b32 s27, s27, 3
  s_lshr_b32 s28, s2, 5
  s_add_u32 s27, s27, s28                      ; hp = (j>>2)*8 + (c>>5)
  s_waitcnt lgkmcnt(0)""")
    srd(A, 12, 4, 2048*1024)
    srd(A, 16, 6, 512*3072)
    srd(A, 20, 8, WS_TOTAL)
    A(f"""
  s_cmp_lt_u32 s24, 4
  s_cbranch_scc1 {name}_compute""")
    A(f"""
  s_sub_u32 s24, s24, 4                        ; lw
  s_lshl_b32 s30, s2, 3
  s_lshl_b32 s31, s24, 1
  s_add_u32 s30, s30, s31                      ; token0
  s_lshl_b32 s31, s30, 10
  v_lshlrev_b32 v2, 4, v0
  buffer_load_dwordx4 v[20:23], v2, s[12:15], s31 offen
  buffer_load_dwordx4 v[24:27], v2, s[12:15], s31 offen offset:1024
  global_load_dwordx4 v[28:31], v2, s[10:11]
  ; x pattern
  v_lshrrev_b32 v3, 3, v0                      ; l>>3
  v_lshrrev_b32 v4, 4, v0                      ; l>>4
  s_and_b32 s32, s24, 1
  s_lshl_b32 s32, s32, 2
  v_add_u32 v4, s32, v4                        ; f
  v_and_b32 v5, 7, v0
  v_xor_b32 v5, v5, v4                         ; c
  v_lshlrev_b32 v5, 4, v5
  v_lshl_add_u32 v8, v3, 10, v5                ; voff_x
  ; W patterns p=0..2 -> v9,v10,v11
  v_lshrrev_b32 v4, 1, v0
  v_and_b32 v4, 3, v4                          ; r
  v_and_b32 v5, 1, v0
  v_lshlrev_b32 v5, 4, v5                      ; half*16
  s_lshl_b32 s33, s27, 6
  v_add_u32 v5, s33, v5""")
    for p in range(3):
        A(f"""
  v_add_u32 v6, {8*p}, v3                      ; b
  v_mul_u32_u24 v7, 43, v6
  v_lshrrev_b32 v7, 8, v7                      ; kgl = b/6
  v_mul_u32_u24 v12, 6, v7
  v_sub_u32 v6, v6, v12                        ; s = b%6
  v_lshl_add_u32 v7, v7, 2, v4
  v_mul_u32_u24 v7, 3072, v7
  v_lshrrev_b32 v12, 1, v6
  v_lshlrev_b32 v12, 10, v12                   ; (s>>1)*1024
  v_and_b32 v6, 1, v6
  v_lshlrev_b32 v6, 5, v6                      ; (s&1)*32
  v_add3_u32 v7, v7, v12, v6
  v_add_u32 v{9+p}, v7, v5""")
    A(f"""
  s_lshl_b32 s34, s26, 17
  s_lshl_b32 s35, s24, 13
  s_add_u32 s34, s34, s35
  s_mul_i32 s35, s24, {16*3072}
  s_lshl_b32 s36, s24, 10
  s_mul_i32 s37, s24, 3072
  s_add_u32 s37, s37, 16384""")
    def issue_chunk(kc):
        st = (kc % NST) * STG
        for n in range(4):
            A(f"  s_add_u32 m0, s36, {st + n*4096}")
            A(f"  s_add_u32 s38, s34, {n*32768 + kc*128}")
            A(f"  buffer_load_dwordx4 v8, s[12:15], s38 offen lds")
        A(f"  s_add_u32 s39, s35, {kc*64*3072}")
        for p in range(3):
            A(f"  s_add_u32 m0, s37, {st + p*1024}")
            A(f"  s_nop 0")
            A(f"  buffer_load_dwordx4 v{9+p}, s[16:19], s39 offen lds")
    for kc in range(NST): issue_chunk(kc)
    waits = [28, 21, 21, 21, 21, 14, 7, 0]
    for i in range(8):
        A(f"  s_waitcnt vmcnt({waits[i]})")
        if i == 0:
            A("""
  v_lshlrev_b32 v32, 16, v28
  v_and_b32 v33, 0xffff0000, v28
  v_lshlrev_b32 v34, 16, v29
  v_and_b32 v35, 0xffff0000, v29
  v_lshlrev_b32 v36, 16, v30
  v_and_b32 v37, 0xffff0000, v30
  v_lshlrev_b32 v38, 16, v31
  v_and_b32 v39, 0xffff0000, v31""")
            for t, base, acc in ((0, 20, 40), (1, 24, 41)):
                for j in range(4):
                    A(f"  v_lshlrev_b32 v42, 16, v{base+j}")
                    A(f"  v_and_b32 v43, 0xffff0000, v{base+j}")
                    if j == 0: A(f"  v_mul_f32 v{acc}, v42, v32")
                    else: A(f"  v_fmac_f32 v{acc}, v42, v{32+2*j}")
                    A(f"  v_fmac_f32 v{acc}, v43, v{33+2*j}")
            for ctl in ("row_shr:1", "row_shr:2", "row_shr:4", "row_shr:8"):
                A("  s_nop 1")
                A(f"  v_add_f32_dpp v40, v40, v40 {ctl} row_mask:0xf bank_mask:0xf bound_ctrl:0")
                A(f"  v_add_f32_dpp v41, v41, v41 {ctl} row_mask:0xf bank_mask:0xf bound_ctrl:0")
            A("  s_nop 1")
            A("""  v_readlane_b32 s40, v40, 15
  v_readlane_b32 s41, v40, 31
  v_readlane_b32 s42, v40, 47
  v_readlane_b32 s43, v40, 63
  v_readlane_b32 s44, v41, 15
  v_readlane_b32 s45, v41, 31
  v_readlane_b32 s46, v41, 47
  v_readlane_b32 s47, v41, 63
  s_nop 1
  v_mov_b32 v44, s40
  v_add_f32 v44, s41, v44
  v_add_f32 v44, s42, v44
  v_add_f32 v44, s43, v44
  v_mov_b32 v45, s44
  v_add_f32 v45, s45, v45
  v_add_f32 v45, s46, v45
  v_add_f32 v45, s47, v45
  v_cmp_eq_u32 vcc, 1, v0
  s_nop 1
  v_cndmask_b32 v44, v44, v45, vcc
  v_mul_f32 v44, 0xbfb8aa3b, v44               ; -log2e * z
  v_exp_f32 v44, v44
  s_nop 0
  v_add_f32 v44, 1.0, v44
  v_rcp_f32 v44, v44
  s_lshl_b32 s40, s30, 2
  v_lshlrev_b32 v45, 2, v0
  v_add_u32 v45, s40, v45""")
            A(f"  v_add_u32 v45, {hex(WS_G)}, v45")
        A("  s_barrier")
        if 1 <= i <= 3: issue_chunk(i + 4)
    A(f"""
  v_cmp_gt_u32 vcc, 2, v0
  s_and_saveexec_b64 s[48:49], vcc
  buffer_store_dword v44, v45, s[20:23], 0 offen
  s_endpgm""")
    A(f"{name}_compute:")
    ACC = [64, 80, 96]
    XA = [2, 3, 4, 5]
    WA = 6
    F = [[16, 20, 24, 28], [32, 36, 40, 44]]
    A(f"""
  v_and_b32 v8, 31, v0                         ; token
  v_lshrrev_b32 v9, 5, v0                      ; hh
  v_lshrrev_b32 v10, 1, v8
  v_and_b32 v10, 7, v10                        ; f
  s_lshl_b32 s30, s24, 12                      ; w*32*128
  v_lshlrev_b32 v11, 7, v8
  v_add_u32 v11, s30, v11""")
    for s in range(4):
        A(f"  v_add_u32 v12, {2*s}, v9")
        A(f"  v_xor_b32 v12, v12, v10")
        A(f"  v_lshl_add_u32 v{XA[s]}, v12, 4, v11")
    A(f"""
  v_and_b32 v8, 15, v0                         ; i
  v_lshrrev_b32 v10, 4, v0
  v_and_b32 v10, 1, v10                        ; u
  v_mul_u32_u24 v11, 12, v9
  v_add_u32 v11, v11, v10                      ; 2hh*6+u
  v_lshlrev_b32 v11, 7, v11
  v_lshrrev_b32 v12, 2, v8
  v_lshl_add_u32 v11, v12, 5, v11
  v_and_b32 v12, 3, v8
  v_lshl_add_u32 v11, v12, 3, v11
  v_add_u32 v{WA}, 16384, v11""")
    for r in range(48): A(f"  v_mov_b32 v{64+r}, 0")
    def reads(buf, s):
        A(f"  ds_read_b128 {vr(F[buf][0],4)}, v{XA[s]}")
        for t in range(3):
            A(f"  ds_read_b64_tr_b16 {vr(F[buf][1+t],2)}, v{WA} offset:{s*3072 + t*256}")
            A(f"  ds_read_b64_tr_b16 {vr(F[buf][1+t]+2,2)}, v{WA} offset:{s*3072 + t*256 + 768}")
    def mfmas(buf):
        x = vr(F[buf][0],4)
        A(f"  {MFMA} {vr(ACC[0],16)}, {vr(F[buf][1],4)}, {x}, {vr(ACC[0],16)}")
        A(f"  {MFMA} {vr(ACC[1],16)}, {vr(F[buf][2],4)}, {x}, {vr(ACC[1],16)}")
        A(f"  {MFMA} {vr(ACC[2],16)}, {x}, {vr(F[buf][3],4)}, {vr(ACC[2],16)}")
    def advance(kc):
        d = STG if ((kc+1) % NST) != 0 else -(NST-1)*STG
        for r in XA + [WA]:
            if d > 0: A(f"  v_add_u32 v{r}, {d}, v{r}")
            else: A(f"  v_subrev_u32 v{r}, {-d}, v{r}")
    A("  s_barrier")
    reads(0, 0)
    for kc in range(8):
        for s in range(4):
            b = s & 1
            if s < 3:
                reads(b ^ 1, s + 1)
                A("  s_waitcnt lgkmcnt(7)")
            else:
                A("  s_waitcnt lgkmcnt(0)")
                if kc < 7:
                    advance(kc)
                    A("  s_barrier")
                    reads(0, 0)
            mfmas(b)
    A(f"""
  s_nop 7
  s_lshl_b32 s30, s26, 2
  s_add_u32 s30, s30, s24
  s_lshl_b32 s31, s27, 7                       ; (2hp)*64
  s_add_u32 s31, s31, s30
  s_lshl_b32 s31, s31, 10
  v_lshlrev_b32 v2, 4, v0                      ; lane*16
  s_mov_b32 s33, {hex(f2u(QSCALE))}
  s_nop 3""")
    for r in range(16): A(f"  v_mul_f32 v{64+r}, s33, v{64+r}")
    for r in range(8): A(f"  v_cvt_pk_bf16_f32 v{16+r}, v{64+2*r}, v{65+2*r}")
    for r in range(8): A(f"  v_cvt_pk_bf16_f32 v{24+r}, v{80+2*r}, v{81+2*r}")
    for r in range(8): A(f"  v_cvt_pk_bf16_f32 v{32+r}, v{96+2*r}, v{97+2*r}")
    A(f"""
  s_add_u32 s34, s31, {hex(WS_QF)}
  s_add_u32 s35, s34, 65536
  buffer_store_dwordx4 v[16:19], v2, s[20:23], s34 offen
  buffer_store_dwordx4 v[20:23], v2, s[20:23], s35 offen
  s_add_u32 s34, s31, {hex(WS_KF)}
  s_add_u32 s35, s34, 65536
  buffer_store_dwordx4 v[24:27], v2, s[20:23], s34 offen
  buffer_store_dwordx4 v[28:31], v2, s[20:23], s35 offen
  v_and_b32 v3, 15, v0
  v_lshlrev_b32 v3, 4, v3
  v_lshrrev_b32 v4, 5, v0
  v_lshl_add_u32 v3, v4, 8, v3
  v_lshrrev_b32 v4, 4, v0
  v_and_b32 v4, 1, v4
  v_lshl_add_u32 v3, v4, 16, v3
  s_add_u32 s34, s31, {hex(WS_VF)}
  buffer_store_dwordx4 v[32:35], v3, s[20:23], s34 offen
  buffer_store_dwordx4 v[36:39], v3, s[20:23], s34 offen offset:512
{name}_end:
  s_endpgm""")
    return kernel_desc(name, 112, 64)
LDS_K1 = NST*STG
```

```python
from common import *
STG = 40960; NST = 3
CNT = NST*STG
LDS_K2 = CNT + 256
PART_W = 8*3*1024
Q = 32; O = 64; S = [192, 208]; P = 224; KB = [16, 20]; VB = [24, 232]; M = 240
ORDER = "e0 p7 e1 e2 e3 Bp L1 c0 e4 e5 c1 e6 e7 c2 e8 W S L2 e9 c3 e10 e11 c4 e12 e13 A c5 e14 e15 c6"
def attn_step(A, kb, jq):
    b = jq & 1; So, Sn = S[b], S[b ^ 1]
    pj = (jq - 1) % 8; pkb = kb if jq > 0 else kb ^ 1
    nj = (jq + 1) % 8; nkb = kb if jq < 7 else kb ^ 1
    for tok in ORDER.split():
        if tok[0] == 'e':
            i = int(tok[1:]); A(f"  v_exp_f32 v{So+i}, v{So+i}")
        elif tok[0] == 'c':
            i = int(tok[1:]); A(f"  v_cvt_pk_bf16_f32 v{P+i}, v{So+2*i}, v{So+2*i+1}")
        elif tok[0] == 'p':
            i = int(tok[1:]); A(f"  v_cvt_pk_bf16_f32 v{P+i}, v{Sn+2*i}, v{Sn+2*i+1}")
        elif tok == 'S':
            A(f"  {MFMA} {vr(Sn,16)}, {vr(KB[nkb],4)}, {vr(Q+4*nj,4)}, 0")
        elif tok == 'A':
            A(f"  {MFMA} {vr(O+16*jq,16)}, {vr(VB[kb],4)}, {vr(P,4)}, {vr(O+16*jq,16)}")
        elif tok == 'Bp':
            A(f"  {MFMA} {vr(O+16*pj,16)}, {vr(VB[pkb]+4,4)}, {vr(P+4,4)}, {vr(O+16*pj,16)}")
        elif tok == 'L1':
            if jq == 0:
                A(f"  buffer_load_dwordx4 {vr(KB[kb^1],4)}, v1, s[20:23], s30 offen")
        elif tok == 'L2':
            if jq == 0:
                A(f"  s_mov_b64 exec, s[36:37]")
                A(f"  buffer_load_dwordx4 {vr(VB[kb^1],4)}, v2, s[20:23], s31 offen")
                A(f"  buffer_load_dwordx4 {vr(VB[kb^1]+4,4)}, v2, s[20:23], s31 offen offset:512")
                A(f"  s_mov_b64 exec, -1")
                A(f"  s_add_u32 s30, s30, 1024")
                A(f"  s_add_u32 s31, s31, 1024")
        elif tok == 'W':
            if jq == 7: A("  s_waitcnt vmcnt(0)")
        else: raise Exception(tok)
def gen_attn(A, name):
    A(f"""
  s_setprio 3
  v_lshlrev_b32 v1, 4, v0                      ; lane*16
  v_and_b32 v2, 15, v0
  v_lshlrev_b32 v2, 4, v2
  v_lshrrev_b32 v3, 5, v0
  v_lshl_add_u32 v2, v3, 8, v2                 ; hh*256 + d*16
  s_mov_b32 s36, 0x0000ffff
  s_mov_b32 s37, 0x0000ffff
  s_lshl_b32 s33, s28, 16                      ; head*64*1024
  s_lshl_b32 s34, s29, 13                      ; qb*8*1024
  s_add_u32 s34, s34, s33
  s_add_u32 s34, s34, {hex(WS_QF)}""")
    for j in range(8):
        A(f"  buffer_load_dwordx4 {vr(Q+4*j,4)}, v1, s[20:23], s34 offen" + (f" offset:{(j%4)*1024}" if j % 4 else ""))
        if j == 3: A("  s_add_u32 s34, s34, 4096")
    A(f"""
  s_lshl_b32 s35, s24, 14
  s_add_u32 s35, s35, s33
  s_add_u32 s32, s35, {hex(WS_KF)}
  s_add_u32 s35, s35, {hex(WS_VF)}             ; V base
  v_mov_b32 v4, 0x3f803f80
  v_and_b32 v5, 16, v0
  v_cmp_ne_u32 vcc, 0, v5
  v_mov_b32 v5, 0
  s_nop 0
  v_cndmask_b32 v4, v5, v4, vcc""")
    for b in range(2):
        for r in range(8): A(f"  v_mov_b32 v{VB[b]+r}, v4")
    A(f"""
  buffer_load_dwordx4 {vr(KB[0],4)}, v1, s[20:23], s32 offen
  s_mov_b64 exec, s[36:37]
  buffer_load_dwordx4 {vr(VB[0],4)}, v2, s[20:23], s35 offen
  buffer_load_dwordx4 {vr(VB[0]+4,4)}, v2, s[20:23], s35 offen offset:512
  s_mov_b64 exec, -1
  s_add_u32 s30, s32, 1024
  s_add_u32 s31, s35, 1024""")
    for r in range(128): A(f"  v_mov_b32 v{O+r}, 0")
    for r in range(8): A(f"  v_mov_b32 v{P+r}, 0")
    for r in range(8): A(f"  v_mov_b32 v{M+r}, 0")
    A(f"  v_mov_b32 v{S[1]+14}, 0\n  v_mov_b32 v{S[1]+15}, 0")
    A(f"""
  s_barrier                                    ; barrier #0
  s_waitcnt vmcnt(0)
  {MFMA} {vr(S[0],16)}, {vr(KB[0],4)}, {vr(Q,4)}, 0
  s_mov_b32 s38, 0
  s_nop 7
  s_nop 3
.p2align 6
{name}_aloop:""")
    for kb in range(2):
        for jq in range(8): attn_step(A, kb, jq)
    A(f"""
  s_add_u32 s38, s38, 1
  s_cmp_lt_u32 s38, 8
  s_cbranch_scc1 {name}_aloop
  v_cvt_pk_bf16_f32 v{P+7}, v{S[1]+14}, v{S[1]+15}
  s_nop 1
  {MFMA} {vr(O+16*7,16)}, {vr(VB[1]+4,4)}, {vr(P+4,4)}, {vr(O+16*7,16)}
  s_nop 7
  s_nop 7""")
    A(f"  v_mov_b32 v4, 0")
    A(f"  v_mov_b32 v5, 0")
    for j in range(8):
        for r in range(8):
            A(f"  v_fma_f32 v4, v{O+16*j+r}, v5, v4")
    A(f"""
  s_mov_b32 s40, 0x1f800000                    ; 2^-64
  s_mov_b32 s41, 0x5f800000                    ; 2^64
  v_cmp_eq_f32 vcc, v4, v4
  s_mov_b64 s[42:43], vcc""")
    for j in range(8):
        A(f"""  v_cmp_le_f32 vcc, s40, v{O+16*j+8}
  s_and_b64 s[42:43], s[42:43], vcc
  v_cmp_ge_f32 vcc, s41, v{O+16*j+8}
  s_and_b64 s[42:43], s[42:43], vcc""")
    A(f"""
  s_cmp_eq_u64 s[42:43], exec
  s_cbranch_scc1 {name}_adone""")
    for r in range(8): A(f"  v_mov_b32 v{M+r}, 0xff800000")
    A(f"""
  s_mov_b32 s38, 0
  s_mov_b32 s30, s32
{name}_fb1:
  buffer_load_dwordx4 {vr(KB[0],4)}, v1, s[20:23], s30 offen
  s_waitcnt vmcnt(0)""")
    for j in range(8):
        A(f"  {MFMA} {vr(S[0],16)}, {vr(KB[0],4)}, {vr(Q+4*j,4)}, 0")
        A("  s_nop 7\n  s_nop 7")
        for r in range(0, 16, 2):
            A(f"  v_max3_f32 v{M+j}, v{S[0]+r}, v{S[0]+r+1}, v{M+j}")
    A(f"""
  s_add_u32 s30, s30, 1024
  s_add_u32 s38, s38, 1
  s_cmp_lt_u32 s38, 16
  s_cbranch_scc1 {name}_fb1""")
    for j in range(8):
        A(f"  v_mov_b32 v4, v{M+j}")
        A(f"  s_nop 1")
        A(f"  v_permlane32_swap_b32 v4, v{M+j}")
        A(f"  s_nop 1")
        A(f"  v_max_f32 v{M+j}, v4, v{M+j}")
    for r in range(128): A(f"  v_mov_b32 v{O+r}, 0")
    A(f"""
  s_mov_b32 s38, 0
  s_mov_b32 s30, s32
  s_mov_b32 s31, s35
{name}_fb2:
  buffer_load_dwordx4 {vr(KB[0],4)}, v1, s[20:23], s30 offen
  s_mov_b64 exec, s[36:37]
  buffer_load_dwordx4 {vr(VB[0],4)}, v2, s[20:23], s31 offen
  buffer_load_dwordx4 {vr(VB[0]+4,4)}, v2, s[20:23], s31 offen offset:512
  s_mov_b64 exec, -1
  s_waitcnt vmcnt(0)""")
    for j in range(8):
        A(f"  {MFMA} {vr(S[0],16)}, {vr(KB[0],4)}, {vr(Q+4*j,4)}, 0")
        A("  s_nop 7\n  s_nop 7")
        for r in range(16): A(f"  v_sub_f32 v{S[0]+r}, v{S[0]+r}, v{M+j}")
        for r in range(16): A(f"  v_exp_f32 v{S[0]+r}, v{S[0]+r}")
        A("  s_nop 0")
        for r in range(8): A(f"  v_cvt_pk_bf16_f32 v{P+r}, v{S[0]+2*r}, v{S[0]+2*r+1}")
        A("  s_nop 1")
        A(f"  {MFMA} {vr(O+16*j,16)}, {vr(VB[0],4)}, {vr(P,4)}, {vr(O+16*j,16)}")
        A(f"  {MFMA} {vr(O+16*j,16)}, {vr(VB[0]+4,4)}, {vr(P+4,4)}, {vr(O+16*j,16)}")
    A(f"""
  s_add_u32 s30, s30, 1024
  s_add_u32 s31, s31, 1024
  s_add_u32 s38, s38, 1
  s_cmp_lt_u32 s38, 16
  s_cbranch_scc1 {name}_fb2
  s_nop 7
  s_nop 7
{name}_adone:
  s_barrier
  s_mul_i32 s40, s24, {PART_W}
  v_add_u32 v4, s40, v1
  v_lshlrev_b32 v5, 3, v0
  v_add_u32 v5, s40, v5""")
    for j in range(8):
        A(f"  v_mov_b32 v{O+16*j+9}, v{M+j}")
        A(f"  ds_write_b128 v4, {vr(O+16*j,4)} offset:{j*3072}")
        A(f"  ds_write_b128 v4, {vr(O+16*j+4,4)} offset:{j*3072+1024}")
        A(f"  ds_write_b64 v5, {vr(O+16*j+8,2)} offset:{j*3072+2048}")
    A(f"""
  s_waitcnt lgkmcnt(0)
  s_barrier                                    ; barrier #2
  s_mul_i32 s40, s24, {2*3072}
  v_add_u32 v4, s40, v1
  v_lshlrev_b32 v5, 3, v0
  v_add_u32 v5, s40, v5
  s_lshl_b32 s41, s29, 3                       ; qb*8
  s_lshl_b32 s42, s24, 1
  s_add_u32 s41, s41, s42
  s_lshl_b32 s41, s41, 5
  s_add_u32 s41, s41, s28                      ; *32 + head
  s_lshl_b32 s41, s41, 10
  s_add_u32 s41, s41, {hex(WS_OF)}""")
    for t in range(2):
        R = 64
        A(f"  v_add_u32 v6, {2*PART_W}, v4\n  v_add_u32 v7, {2*PART_W}, v5")
        for w in range(4):
            a4, a5 = ("v4", "v5") if w < 2 else ("v6", "v7")
            o = (w % 2)*PART_W + t*3072
            A(f"  ds_read_b128 {vr(R+12*w,4)}, {a4} offset:{o}")
            A(f"  ds_read_b128 {vr(R+12*w+4,4)}, {a4} offset:{o+1024}")
            A(f"  ds_read_b64 {vr(R+12*w+8,2)}, {a5} offset:{o+2048}")
        A("  s_waitcnt lgkmcnt(0)")
        A(f"  v_max3_f32 v8, v{R+9}, v{R+12+9}, v{R+24+9}")
        A(f"  v_max_f32 v8, v8, v{R+36+9}")
        for w in range(4):
            A(f"  v_sub_f32 v{9+w}, v{R+12*w+9}, v8")
        for w in range(4):
            A(f"  v_exp_f32 v{9+w}, v{9+w}")
        A("  s_nop 0")
        A(f"  v_mul_f32 v13, v9, v{R+8}")
        for w in range(1, 4): A(f"  v_fmac_f32 v13, v{9+w}, v{R+12*w+8}")
        A("  v_rcp_f32 v13, v13")
        for r in range(8):
            A(f"  v_mul_f32 v{16+r}, v9, v{R+r}")
            for w in range(1, 4): A(f"  v_fmac_f32 v{16+r}, v{9+w}, v{R+12*w+r}")
        for r in range(8): A(f"  v_mul_f32 v{16+r}, v13, v{16+r}")
        for r in range(4): A(f"  v_cvt_pk_bf16_f32 v{24+4*t+r}, v{16+2*r}, v{17+2*r}")
        A(f"  buffer_store_dwordx4 {vr(24+4*t,4)}, v1, s[20:23], s41 offen")
        if t == 0: A(f"  s_add_u32 s41, s41, {32*1024}")
    A("  s_endpgm")
def gen_ffn1(A, name):
    ACC = 64
    F = [[16, 20, 24, 28, 32], [36, 40, 44, 48, 52]]
    XA = [2, 3, 4, 5]; WA = [6, 7, 8]; DX = 9; DW = [10, 11, 12]
    A(f"""
  s_sub_u32 s24, s24, 4                        ; gw
  v_mov_b32 v13, {CNT}
  v_mov_b32 v14, 0
  v_mov_b32 v15, 1
  s_cmp_lg_u32 s24, 0
  s_cbranch_scc1 {name}_g_nocnt
  ds_write_b32 v13, v14
  s_waitcnt lgkmcnt(0)
{name}_g_nocnt:
  s_barrier                                    ; barrier #0
  s_cmp_ge_u32 s27, 15
  s_cbranch_scc1 {name}_g_done
  v_lshrrev_b32 v56, 3, v0                     ; l>>3
  v_lshrrev_b32 v57, 4, v0
  s_and_b32 s32, s24, 1
  s_lshl_b32 s33, s32, 2
  v_add_u32 v57, s33, v57                      ; f
  v_and_b32 v58, 7, v0
  v_xor_b32 v58, v58, v57
  v_lshlrev_b32 v58, 4, v58
  v_lshl_add_u32 v{DX}, v56, 10, v58
  v_lshrrev_b32 v57, 1, v0
  v_and_b32 v57, 3, v57                        ; r
  v_and_b32 v58, 1, v0
  v_lshlrev_b32 v58, 4, v58                    ; half*16
  s_mul_i32 s33, s27, 192                      ; cg*6*32
  v_add_u32 v58, s33, v58
  s_lshr_b32 s34, s24, 1""")
    for p in range(3):
        A(f"""
  v_add_u32 v59, {8*p}, v56                    ; b
  v_mul_u32_u24 v60, 43, v59
  v_lshrrev_b32 v60, 8, v60                    ; kgl
  v_mul_u32_u24 v61, 6, v60
  v_sub_u32 v59, v59, v61                      ; s
  v_xor_b32 v59, s34, v59                      ; s ^ matrix
  v_lshl_add_u32 v60, v60, 2, v57              ; row
  v_mul_u32_u24 v60, 2752, v60
  v_lshl_add_u32 v60, v59, 5, v60
  v_add_u32 v{DW[p]}, v60, v58""")
    A(f"""
  s_cmp_eq_u32 s34, 0
  s_cselect_b32 s16, s6, s8
  s_cselect_b32 s17, s7, s9
  s_mov_b32 s18, {hex(512*2752)}
  s_mov_b32 s19, 0x20000
  s_lshl_b32 s40, s26, 17
  s_lshl_b32 s41, s24, 13
  s_add_u32 s40, s40, s41
  s_mul_i32 s41, s32, {32*2752}
  s_lshl_b32 s42, s24, 10
  s_mul_i32 s43, s34, 12288
  s_mul_i32 s44, s32, 6144
  s_add_u32 s43, s43, s44
  s_add_u32 s43, s43, 16384
  v_and_b32 v56, 31, v0                        ; token
  v_lshrrev_b32 v57, 5, v0                     ; hh
  v_lshrrev_b32 v58, 1, v56
  v_and_b32 v58, 7, v58                        ; f
  s_lshl_b32 s45, s34, 13
  v_lshlrev_b32 v59, 7, v56
  v_add_u32 v59, s45, v59""")
    for s in range(4):
        A(f"  v_add_u32 v60, {2*s}, v57\n  v_xor_b32 v60, v60, v58\n  v_lshl_add_u32 v{XA[s]}, v60, 4, v59")
    A(f"""
  v_and_b32 v56, 15, v0                        ; i
  v_lshrrev_b32 v58, 4, v0
  v_and_b32 v58, 1, v58                        ; gu
  v_mul_u32_u24 v59, {12*128}, v57             ; 2hh*6*128
  v_lshrrev_b32 v60, 2, v56
  v_lshl_add_u32 v59, v60, 5, v59
  v_and_b32 v60, 3, v56
  v_lshl_add_u32 v59, v60, 3, v59
  v_mul_u32_u24 v60, 12288, v58
  v_add3_u32 v59, v59, v60, 0
  v_add_u32 v59, 16384, v59
  s_mul_i32 s46, s32, 3                        ; 3*jw""")
    for sl in range(3):
        A(f"""  s_add_u32 s47, s46, {sl}
  v_xor_b32 v60, s47, v58                      ; s ^ gu
  v_lshl_add_u32 v{WA[sl]}, v60, 7, v59""")
    for r in range(96): A(f"  v_mov_b32 v{ACC+r}, 0")
    def issue_chunk(kc):
        st = (kc % NST) * STG
        for n in range(4):
            A(f"  s_add_u32 m0, s42, {st + n*4096}")
            A(f"  s_add_u32 s48, s40, {n*32768 + kc*128}")
            A(f"  buffer_load_dwordx4 v{DX}, s[12:15], s48 offen lds")
        for a in range(2):
            A(f"  s_add_u32 s49, s41, {(kc*64 + a*16)*2752}")
            for p in range(3):
                A(f"  s_add_u32 m0, s43, {st + (3*a+p)*1024}")
                A(f"  s_nop 0")
                A(f"  buffer_load_dwordx4 v{DW[p]}, s[16:19], s49 offen lds")
    def reads(buf, s):
        A(f"  ds_read_b128 {vr(F[buf][0],4)}, v{XA[s]}")
        A(f"  ds_read_b128 {vr(F[buf][1],4)}, v{XA[s]} offset:4096")
        for t in range(3):
            A(f"  ds_read_b64_tr_b16 {vr(F[buf][2+t],2)}, v{WA[t]} offset:{s*3072}")
            A(f"  ds_read_b64_tr_b16 {vr(F[buf][2+t]+2,2)}, v{WA[t]} offset:{s*3072 + 768}")
    def mfmas(buf):
        for t in range(3):
            for u in range(2):
                a = vr(ACC + 16*(2*t+u), 16)
                A(f"  {MFMA} {a}, {vr(F[buf][2+t],4)}, {vr(F[buf][u],4)}, {a}")
    def advance(kc):
        d = STG if ((kc+1) % NST) != 0 else -(NST-1)*STG
        for r in XA + WA:
            if d > 0: A(f"  v_add_u32 v{r}, {d}, v{r}")
            else: A(f"  v_subrev_u32 v{r}, {-d}, v{r}")
    def sync(i, deferred):
        A(f"  s_waitcnt vmcnt({10 if i < 7 else 0})")
        A(f"  s_mov_b64 exec, 1\n  ds_add_u32 v13, v15\n  s_mov_b64 exec, -1")
        if deferred is not None: deferred()
        L = A.newlabel(name + "_poll")
        A(f"""{L}:
  ds_read_b32 v14, v13
  s_waitcnt lgkmcnt(0)
  v_readfirstlane_b32 s50, v14
  s_nop 0
  s_cmp_ge_u32 s50, {4*(i+1)}
  s_cbranch_scc1 {L}_ok
  s_sleep 1
  s_branch {L}
{L}_ok:""")
    issue_chunk(0); issue_chunk(1)
    for kc in range(8):
        if kc == 0:
            sync(0, None)
        else:
            A("  s_waitcnt lgkmcnt(0)")
            advance(kc-1)
            sync(kc, lambda: mfmas(1))
        if kc + 2 < 8: issue_chunk(kc + 2)
        reads(0, 0)
        for s in range(3):
            b = s & 1
            reads(b ^ 1, s + 1)
            A("  s_waitcnt lgkmcnt(8)")
            mfmas(b)
    A("  s_waitcnt lgkmcnt(0)")
    mfmas(1)
    A(f"""
  s_nop 7
  s_nop 7
  v_lshlrev_b32 v2, 4, v0
  s_mov_b32 s50, 0xbfb8aa3b
  s_lshl_b32 s51, s26, 2
  s_lshl_b32 s52, s34, 1
  s_add_u32 s51, s51, s52
  s_mul_i32 s51, s51, 86
  s_mul_i32 s52, s27, 6
  s_add_u32 s52, s52, s46
  s_add_u32 s51, s51, s52
  s_lshl_b32 s51, s51, 10
  s_add_u32 s51, s51, {hex(WS_HF)}""")
    for t in range(3):
        Ls = A.newlabel(name + "_skip")
        A(f"  s_add_u32 s53, s52, {t}\n  s_cmp_ge_u32 s53, 86\n  s_cbranch_scc1 {Ls}")
        for u in range(2):
            a = ACC + 16*(2*t+u)
            for r in range(8): A(f"  v_mul_f32 v{16+r}, s50, v{a+r}")
            for r in range(8): A(f"  v_exp_f32 v{16+r}, v{16+r}")
            for r in range(8): A(f"  v_mul_f32 v{a+8+r}, v{a+r}, v{a+8+r}")
            for r in range(8): A(f"  v_add_f32 v{16+r}, 1.0, v{16+r}")
            for r in range(8): A(f"  v_rcp_f32 v{16+r}, v{16+r}")
            A("  s_nop 0")
            for r in range(8): A(f"  v_mul_f32 v{16+r}, v{a+8+r}, v{16+r}")
            for r in range(4): A(f"  v_cvt_pk_bf16_f32 v{24+4*u+r}, v{16+2*r}, v{17+2*r}")
            A(f"  s_add_u32 s54, s51, {t*1024 + u*86*1024}")
            A(f"  buffer_store_dwordx4 {vr(24+4*u,4)}, v2, s[20:23], s54 offen")
        A(f"{Ls}:")
    A(f"""
{name}_g_done:
  s_barrier                                    ; barrier #1
  s_barrier                                    ; barrier #2
  s_endpgm""")
def gen_k2(A, name="k2_kernel"):
    kernel_begin(A, name)
    A(f"""
  s_cmp_ge_u32 s2, 256
  s_cbranch_scc1 {name}_end
  s_load_dwordx2 s[4:5], s[0:1], {KA_AX}
  s_load_dwordx4 s[6:9], s[0:1], {KA_WG}       ; w_gate s[6:7], w_up s[8:9]  (needs 4-aligned dest? use two loads)
""".replace(f"  s_load_dwordx4 s[6:9], s[0:1], {KA_WG}       ; w_gate s[6:7], w_up s[8:9]  (needs 4-aligned dest? use two loads)", f"  s_load_dwordx2 s[6:7], s[0:1], {KA_WG}\n  s_load_dwordx2 s[8:9], s[0:1], {KA_WU}"))
    A(f"""
  s_load_dwordx2 s[10:11], s[0:1], {KA_WS}
  v_lshrrev_b32 v1, 6, v0
  v_and_b32 v0, 63, v0
  s_and_b32 s25, s2, 7
  s_lshr_b32 s27, s2, 3
  v_readfirstlane_b32 s24, v1
  s_and_b32 s27, s27, 3                        ; (c>>3)&3
  s_lshl_b32 s28, s25, 2
  s_add_u32 s28, s28, s27                      ; head = j*4 + ((c>>3)&3)
  s_lshr_b32 s29, s2, 5                        ; qb
  s_and_b32 s26, s25, 3
  s_lshl_b32 s26, s26, 2
  s_add_u32 s26, s26, s27                      ; rb
  s_lshr_b32 s27, s25, 2
  s_lshl_b32 s27, s27, 3
  s_add_u32 s27, s27, s29                      ; cg
  s_waitcnt lgkmcnt(0)""")
    srd(A, 12, 4, 2048*1024)
    srd(A, 20, 10, WS_TOTAL)
    A(f"""
  s_cmp_ge_u32 s24, 4
  s_cbranch_scc1 {name}_g""")
    gen_attn(A, name)
    A(f"{name}_g:")
    gen_ffn1(A, name)
    A(f"{name}_end:\n  s_endpgm")
    return kernel_desc(name, 256, 80)
```

```python
from common import *
D = 8; NSTEP = 16
RING = D*2048
LDS_K3 = 8*RING
def gen_k3(A, name="k3_kernel"):
    kernel_begin(A, name)
    ACC = 64; ACT = 128; WF = [16, 24]
    A(f"""
  s_cmp_ge_u32 s2, 256
  s_cbranch_scc1 {name}_end
  s_load_dwordx2 s[4:5], s[0:1], {KA_WO}
  s_load_dwordx2 s[6:7], s[0:1], {KA_WD}
  s_load_dwordx2 s[8:9], s[0:1], {KA_OUT}
  s_load_dwordx2 s[10:11], s[0:1], {KA_WS}
  v_lshrrev_b32 v1, 6, v0
  v_and_b32 v0, 63, v0
  s_and_b32 s25, s2, 7
  s_lshr_b32 s27, s2, 3
  v_readfirstlane_b32 s24, v1
  s_lshr_b32 s26, s25, 1
  s_lshl_b32 s26, s26, 3
  s_and_b32 s27, s27, 7
  s_add_u32 s26, s26, s27                      ; tb = (j>>1)*8 + ((c>>3)&7)
  s_and_b32 s27, s25, 1
  s_lshl_b32 s27, s27, 2
  s_lshr_b32 s28, s2, 6
  s_add_u32 s27, s27, s28                      ; nb = (j&1)*4 + (c>>6)
  s_waitcnt lgkmcnt(0)""")
    srd(A, 20, 10, WS_TOTAL)
    srd(A, 16, 8, 2048*1024)
    A(f"""
  s_cmp_lt_u32 s24, 2
  s_cselect_b32 s12, s4, s6
  s_cselect_b32 s13, s5, s7
  s_mov_b32 s14, {hex(1376*1024)}
  s_cselect_b32 s14, {hex(512*1024)}, s14
  s_mov_b32 s15, 0x20000
  s_cselect_b32 s30, 16, 15
  s_mov_b32 s31, 86
  s_cselect_b32 s31, 32, s31
  s_mov_b32 s32, {hex(WS_HF)}
  s_cselect_b32 s32, {hex(WS_OF)}, s32
  s_cselect_b32 s33, 0, 2
  s_sub_u32 s33, s24, s33
  s_mul_i32 s33, s33, s30
  s_sub_u32 s34, s31, s33
  s_min_u32 s34, s34, s30
  s_lshl_b32 s35, s33, 14
  s_lshl_b32 s36, s27, 7
  s_add_u32 s35, s35, s36
  s_lshl_b32 s36, s26, 1
  s_mul_i32 s36, s36, s31
  s_add_u32 s36, s36, s33
  s_lshl_b32 s36, s36, 10
  s_add_u32 s36, s36, s32
  s_lshl_b32 s37, s31, 10
  s_lshl_b32 s38, s24, 14
  v_lshrrev_b32 v2, 5, v0
  v_lshrrev_b32 v3, 1, v0
  v_and_b32 v3, 3, v3
  v_lshl_add_u32 v2, v2, 2, v3
  v_lshlrev_b32 v2, 10, v2
  v_lshrrev_b32 v3, 3, v0
  v_and_b32 v3, 3, v3
  v_lshl_add_u32 v2, v3, 5, v2
  v_and_b32 v3, 1, v0
  v_lshl_add_u32 v2, v3, 4, v2
  v_lshlrev_b32 v3, 4, v0                      ; v3 = lane*16
  v_lshrrev_b32 v4, 5, v0
  v_lshlrev_b32 v4, 9, v4                      ; hh*4*128
  v_lshrrev_b32 v5, 4, v0
  v_and_b32 v5, 1, v5
  v_lshl_add_u32 v4, v5, 7, v4
  v_and_b32 v5, 15, v0
  v_lshrrev_b32 v6, 2, v5
  v_lshl_add_u32 v4, v6, 5, v4
  v_and_b32 v6, 3, v5
  v_lshl_add_u32 v4, v6, 3, v4
  v_add_u32 v4, s38, v4                        ; v4
  v_and_b32 v5, 31, v0
  v_lshlrev_b32 v5, 2, v5
  s_lshl_b32 s39, s26, 8
  s_add_u32 s39, s39, {hex(WS_G)}
  buffer_load_dword v8, v5, s[20:23], s39 offen
  buffer_load_dword v9, v5, s[20:23], s39 offen offset:128
  s_mov_b32 s42, 0x40000000""")
    for r in range(64): A(f"  v_mov_b32 v{ACC+r}, 0")
    def issue(s):
        slot = s % D
        A(f"  s_cmp_gt_u32 s34, {s}")
        A(f"  s_cselect_b32 s40, s35, s42")
        A(f"  s_cselect_b32 s41, s36, s42")
        A(f"  s_add_u32 m0, s38, {slot*2048}")
        A(f"  s_add_u32 s43, s41, s37")
        A(f"  buffer_load_dwordx4 v2, s[12:15], s40 offen lds")
        A(f"  s_add_u32 m0, s38, {slot*2048+1024}")
        A(f"  s_add_u32 s40, s40, 8192")
        A(f"  buffer_load_dwordx4 v2, s[12:15], s40 offen lds")
        A(f"  buffer_load_dwordx4 {vr(ACT+8*slot,4)}, v3, s[20:23], s41 offen")
        A(f"  buffer_load_dwordx4 {vr(ACT+8*slot+4,4)}, v3, s[20:23], s43 offen")
        A(f"  s_add_u32 s35, s35, 16384")
        A(f"  s_add_u32 s36, s36, 1024")
    for s in range(D): issue(s)
    for s in range(NSTEP):
        slot = s % D
        outstanding_after = min(D, NSTEP - s) - 1
        A(f"  s_waitcnt vmcnt({4*outstanding_after})")
        for t in range(2):
            A(f"  ds_read_b64_tr_b16 {vr(WF[0]+4*t,2)}, v4 offset:{slot*2048 + t*256}")
            A(f"  ds_read_b64_tr_b16 {vr(WF[0]+4*t+2,2)}, v4 offset:{slot*2048 + t*256 + 1024}")
        A("  s_waitcnt lgkmcnt(0)")
        for t in range(2):
            for u in range(2):
                a = vr(ACC+16*(2*t+u), 16)
                A(f"  {MFMA} {a}, {vr(WF[0]+4*t,4)}, {vr(ACT+8*slot+4*u,4)}, {a}")
        if s + D < NSTEP: issue(s + D)
    A(f"""
  s_cmp_lt_u32 s24, 2
  s_cbranch_scc1 {name}_useg
  v_sub_f32 v8, 1.0, v8
  v_sub_f32 v9, 1.0, v9
{name}_useg:
  s_nop 7
  s_nop 7""")
    for t in range(2):
        for u in range(2):
            for r in range(16): A(f"  v_mul_f32 v{ACC+16*(2*t+u)+r}, v{8+u}, v{ACC+16*(2*t+u)+r}")
    A(f"""
  s_barrier
  v_add_u32 v5, s38, v3""")
    for tile in range(4):
        for q in range(4):
            A(f"  ds_write_b128 v5, {vr(ACC+16*tile+4*q,4)} offset:{tile*4096+q*1024}")
    A(f"""
  s_waitcnt lgkmcnt(0)
  s_barrier
  s_lshl_b32 s40, s24, 11                      ; (w>>1)*4096 + (w&1)*2048
  v_add_u32 v5, s40, v3
  v_add_u32 v6, 65536, v5""")
    for w in range(8):
        a = "v5" if w < 4 else "v6"
        A(f"  ds_read_b128 {vr(64+8*w,4)}, {a} offset:{(w%4)*16384}")
        A(f"  ds_read_b128 {vr(64+8*w+4,4)}, {a} offset:{(w%4)*16384+1024}")
    A("  s_waitcnt lgkmcnt(0)")
    for r in range(8):
        A(f"  v_add_f32 v{64+r}, v{64+r}, v{72+r}")
        for w in range(2, 8): A(f"  v_add_f32 v{64+r}, v{64+r}, v{64+8*w+r}")
    A(f"""
  v_cvt_pk_bf16_f32 v16, v64, v65
  v_cvt_pk_bf16_f32 v17, v66, v67
  v_cvt_pk_bf16_f32 v18, v68, v69
  v_cvt_pk_bf16_f32 v19, v70, v71
  s_lshr_b32 s40, s24, 1
  s_and_b32 s41, s40, 1                        ; u
  s_lshr_b32 s40, s40, 1                       ; t
  s_lshl_b32 s42, s26, 6
  s_lshl_b32 s41, s41, 5
  s_add_u32 s42, s42, s41
  s_lshl_b32 s42, s42, 10
  s_lshl_b32 s43, s27, 7
  s_lshl_b32 s40, s40, 6
  s_add_u32 s43, s43, s40
  s_and_b32 s40, s24, 1
  s_lshl_b32 s40, s40, 5
  s_add_u32 s43, s43, s40
  s_add_u32 s42, s42, s43
  v_and_b32 v5, 31, v0
  v_lshlrev_b32 v5, 10, v5
  v_lshrrev_b32 v6, 5, v0
  v_lshl_add_u32 v5, v6, 4, v5
  v_permlane32_swap_b32 v16, v18
  v_permlane32_swap_b32 v17, v19
  s_nop 1
  buffer_store_dwordx4 v[16:19], v5, s[16:19], s42 offen
{name}_end:
  s_endpgm""")
    return kernel_desc(name, 192, 64)
```

```python
import sys
from common import *
import k1
def header(launches):
    h = """; gated_mix__mha_block__swiglu_ffn__prompt : hand-written gfx950 kernels (generated by my own python scripts)
"""
    for (k, g, b, lds) in launches:
        h += f"; @launch kernel={k} grid=({g},1,1) block=({b},1,1) lds={lds}\n"
    h += '.amdgcn_target "amdgcn-amd-amdhsa--gfx950"\n'
    return h
def build(parts):
    A = Asm(); descs = []; launches = []
    for p in parts:
        d, l = p(A)
        descs.append(d); launches.append(l)
    return header(launches) + A.text() + "".join(descs)
def p_k1(A):
    return k1.gen_k1(A), ("k1_kernel", 256, 512, k1.LDS_K1)
if __name__ == "__main__":
    parts = [p_k1]
    try:
        import k2
        parts.append(lambda A: (k2.gen_k2(A), ("k2_kernel", 256, 512, k2.LDS_K2)))
    except ImportError: pass
    try:
        import k3
        parts.append(lambda A: (k3.gen_k3(A), ("k3_kernel", 256, 512, k3.LDS_K3)))
    except ImportError: pass
    out = sys.argv[1] if len(sys.argv) > 1 else "gated_mix__mha_block__swiglu_ffn__prompt.s"
    open(out, "w").write(build(parts))
    print("wrote", out)
```

```python
class Asm:
    def __init__(self):
        self.lines = []
        self.uid = 0
    def __call__(self, s=""):
        for l in s.split("\n"):
            self.lines.append(l)
    def label(self, name): self.lines.append(f"{name}:")
    def newlabel(self, p="L"):
        self.uid += 1
        return f"{p}_{self.uid}"
    def text(self): return "\n".join(self.lines) + "\n"
def vr(a, n=1): return f"v{a}" if n == 1 else f"v[{a}:{a+n-1}]"
def sr(a, n=1): return f"s{a}" if n == 1 else f"s[{a}:{a+n-1}]"
def kernel_begin(A, name):
    A(f".text\n.globl {name}\n.p2align 8\n.type {name},@function\n{name}:")
def kernel_desc(name, nvgpr, nsgpr=96, accum=None):
    accum = accum or ((nvgpr + 3) // 4 * 4)
    return f""".section .rodata,"a"
.p2align 6
.amdhsa_kernel {name}
  .amdhsa_next_free_vgpr {nvgpr}
  .amdhsa_next_free_sgpr {nsgpr}
  .amdhsa_accum_offset {accum}
  .amdhsa_group_segment_fixed_size 0
  .amdhsa_kernarg_size 88
  .amdhsa_user_sgpr_count 2
  .amdhsa_user_sgpr_kernarg_segment_ptr 1
  .amdhsa_system_sgpr_workgroup_id_x 1
  .amdhsa_float_denorm_mode_32 3
.end_amdhsa_kernel
"""
def srd(A, d, base_s, nbytes, add=0):
    if add:
        A(f"  s_add_u32 s{d}, s{base_s}, {hex(add)}")
        A(f"  s_addc_u32 s{d+1}, s{base_s+1}, 0")
    else:
        A(f"  s_mov_b32 s{d}, s{base_s}")
        A(f"  s_mov_b32 s{d+1}, s{base_s+1}")
    A(f"  s_mov_b32 s{d+2}, {hex(nbytes)}")
    A(f"  s_mov_b32 s{d+3}, 0x20000")
MFMA = "v_mfma_f32_32x32x16_bf16"

STAMPS = False
CLK = "s_memrealtime"
STAMP_BASE = 64
WS_DIAG = 0x1480000
def stamp(A, i):
    if STAMPS:
        A(f"  {CLK} s[{STAMP_BASE+2*i}:{STAMP_BASE+2*i+1}]")
def stamp_init(A):
    if STAMPS:
        for i in range(16): A(f"  s_mov_b32 s{STAMP_BASE+i}, 0")
        A(f"  {CLK} s[{STAMP_BASE}:{STAMP_BASE+1}]")
def stamp_flush(A, kidx, wave_s, ws_lo, tmpv=2):
    if STAMPS:
        A(f"  {CLK} s[{STAMP_BASE+14}:{STAMP_BASE+15}]")
        A(f"  s_waitcnt lgkmcnt(0)")
        A(f"  s_lshl_b32 s80, s2, 3")
        A(f"  s_add_u32 s80, s80, {wave_s}")
        A(f"  s_lshl_b32 s80, s80, 5")
        A(f"  s_add_u32 s80, s80, {hex(WS_DIAG + kidx*65536)}")
        A(f"  s_mov_b64 exec, -1")
        A(f"  v_mov_b32 v{tmpv}, s80")
        for i in range(8): A(f"  v_mov_b32 v{tmpv+2+i}, s{STAMP_BASE+2*i}")
        A(f"  s_mov_b64 exec, 1")
        A(f"  global_store_dwordx4 v{tmpv}, v[{tmpv+2}:{tmpv+5}], s[{ws_lo}:{ws_lo+1}]")
        A(f"  global_store_dwordx4 v{tmpv}, v[{tmpv+6}:{tmpv+9}], s[{ws_lo}:{ws_lo+1}] offset:16")
        A(f"  s_waitcnt vmcnt(0)")
```

```python
from common import *
import asmlib
from asmlib import stamp, stamp_init, stamp_flush
NST = 3
XB = 16384; WB = 12288
STG = XB + 3*WB
LDS_K1 = NST*STG
LAG = 8
def gen_k1(A, name="k1_kernel"):
    kernel_begin(A, name)
    stamp_init(A)
    A(f"""
  s_cmp_ge_u32 s2, 256
  s_cbranch_scc1 {name}_end
  s_load_dwordx4 s[4:7], s[0:1], {KA_AX}       ; A_x, wqkv
  s_load_dwordx4 s[52:55], s[0:1], {KA_WG}
  s_load_dwordx2 s[8:9], s[0:1], {KA_WS}
  s_load_dwordx2 s[10:11], s[0:1], {KA_GW}
  v_lshrrev_b32 v1, 6, v0
  v_and_b32 v0, 63, v0
  s_and_b32 s25, s2, 7
  s_lshr_b32 s27, s2, 3
  v_readfirstlane_b32 s24, v1
  s_and_b32 s26, s25, 3
  s_lshl_b32 s26, s26, 2
  s_and_b32 s27, s27, 3
  s_add_u32 s26, s26, s27                      ; rb = (j&3)*4 + ((c>>3)&3)
  s_lshr_b32 s27, s25, 2
  s_lshl_b32 s27, s27, 3
  s_lshr_b32 s28, s2, 5
  s_add_u32 s27, s27, s28                      ; cg = (j>>2)*8 + (c>>5)""")
    if asmlib.STAMPS: A("  s_mov_b32 s81, s24")
    A(f"""
  s_cmp_lt_u32 s24, 4
  s_cbranch_scc1 {name}_compute""")
    DX = 8; DQ = [9, 10, 11]; DG = [12, 13, 14]; DU = [15, 16, 17]
    A(f"""
  s_sub_u32 s24, s24, 4                        ; lw
  v_lshrrev_b32 v3, 3, v0                      ; l>>3
  v_lshrrev_b32 v4, 4, v0                      ; l>>4
  s_and_b32 s32, s24, 1
  s_lshl_b32 s32, s32, 2
  v_add_u32 v4, s32, v4                        ; f
  v_and_b32 v5, 7, v0
  v_xor_b32 v5, v5, v4                         ; c
  v_lshlrev_b32 v5, 4, v5
  v_lshl_add_u32 v{DX}, v3, 10, v5             ; voff_x
  s_lshl_b32 s34, s26, 17
  s_lshl_b32 s35, s24, 13
  s_add_u32 s34, s34, s35
  s_lshl_b32 s36, s24, 10
  s_waitcnt lgkmcnt(0)""")
    srd(A, 12, 4, 2048*1024)
    def dma_x(kc, n):
        st = (kc % NST) * STG
        A(f"  s_add_u32 m0, s36, {st + n*4096}")
        A(f"  s_add_u32 s38, s34, {n*32768 + kc*128}")
        A(f"  buffer_load_dwordx4 v{DX}, s[12:15], s38 offen lds")
    for n in range(4): dma_x(0, n)
    srd(A, 16, 6, 512*3072)
    srd(A, 40, 52, 512*2752)
    srd(A, 44, 54, 512*2752)
    srd(A, 20, 8, WS_TOTAL)
    A(f"""
  v_lshrrev_b32 v4, 1, v0
  v_and_b32 v4, 3, v4                          ; r
  v_and_b32 v5, 1, v0
  v_lshlrev_b32 v5, 4, v5                      ; half*16
  s_lshl_b32 s33, s27, 6
  s_mul_i32 s39, s27, 192""")
    for p in range(3):
        A(f"""
  v_add_u32 v6, {8*p}, v3                      ; b
  v_mul_u32_u24 v7, 43, v6
  v_lshrrev_b32 v7, 8, v7                      ; kgl = b/6
  v_mul_u32_u24 v18, 6, v7
  v_sub_u32 v6, v6, v18                        ; s = b%6
  v_lshl_add_u32 v7, v7, 2, v4
  v_mul_u32_u24 v18, 3072, v7
  v_lshrrev_b32 v19, 1, v6
  v_lshl_add_u32 v18, v19, 10, v18             ; + (s>>1)*1024
  v_and_b32 v19, 1, v6
  v_lshl_add_u32 v18, v19, 5, v18              ; + (s&1)*32
  v_add3_u32 v{DQ[p]}, v18, v5, s33
  v_mul_u32_u24 v18, 2752, v7
  v_add3_u32 v18, v18, v5, s39
  v_lshl_add_u32 v{DG[p]}, v6, 5, v18
  v_xor_b32 v6, 1, v6
  v_lshl_add_u32 v{DU[p]}, v6, 5, v18""")
    A(f"""
  s_mul_i32 s35, s24, {16*3072}
  s_mul_i32 s48, s24, {16*2752}
  s_mul_i32 s37, s24, 3072
  s_add_u32 s37, s37, {XB}""")
    def dma_list(kc):
        st = (kc % NST) * STG
        L = [ (lambda n=n: dma_x(kc, n)) for n in range(4) ]
        for reg, (srdr, pats, sb, rs) in enumerate(((16, DQ, 35, 3072), (40, DG, 48, 2752), (44, DU, 48, 2752))):
            for p in range(3):
                def f(reg=reg, srdr=srdr, pats=pats, sb=sb, rs=rs, p=p):
                    A(f"  s_add_u32 m0, s37, {st + reg*WB + p*1024}")
                    A(f"  s_add_u32 s39, s{sb}, {kc*64*rs}")
                    A(f"  buffer_load_dwordx4 v{pats[p]}, s[{srdr}:{srdr+3}], s39 offen lds")
                L.append(f)
        return L
    stream = []
    for kc in range(8): stream += dma_list(kc)
    pos = 4
    def issue_upto(n):
        nonlocal pos
        while pos < n:
            stream[pos](); pos += 1
    issue_upto(13)
    A(f"""
  s_lshl_b32 s30, s2, 3
  s_lshl_b32 s31, s24, 1
  s_add_u32 s30, s30, s31                      ; token0
  s_lshl_b32 s31, s30, 10
  v_lshlrev_b32 v2, 4, v0
  buffer_load_dwordx4 v[20:23], v2, s[12:15], s31 offen
  buffer_load_dwordx4 v[24:27], v2, s[12:15], s31 offen offset:1024
  global_load_dwordx4 v[28:31], v2, s[10:11]""")
    stamp(A, 1)
    for i in range(8):
        tgt = min(13*(i+1) + LAG, 104)
        issue_upto(tgt)
        younger = pos - 13*(i+1) + (3 if i == 0 else 0)
        A(f"  s_waitcnt vmcnt({younger})")
        if i == 0: stamp(A, 2)
        A("  s_barrier")
        if i == 1:
            A("""
  v_lshlrev_b32 v32, 16, v28
  v_and_b32 v33, 0xffff0000, v28
  v_lshlrev_b32 v34, 16, v29
  v_and_b32 v35, 0xffff0000, v29
  v_lshlrev_b32 v36, 16, v30
  v_and_b32 v37, 0xffff0000, v30
  v_lshlrev_b32 v38, 16, v31
  v_and_b32 v39, 0xffff0000, v31""")
            gate_pending = True
    for t, base, acc in ((0, 20, 40), (1, 24, 41)):
        for j in range(4):
            A(f"  v_lshlrev_b32 v42, 16, v{base+j}")
            A(f"  v_and_b32 v43, 0xffff0000, v{base+j}")
            if j == 0: A(f"  v_mul_f32 v{acc}, v42, v32")
            else: A(f"  v_fmac_f32 v{acc}, v42, v{32+2*j}")
            A(f"  v_fmac_f32 v{acc}, v43, v{33+2*j}")
    for ctl in ("row_shr:1", "row_shr:2", "row_shr:4", "row_shr:8"):
        A("  s_nop 1")
        A(f"  v_add_f32_dpp v40, v40, v40 {ctl} row_mask:0xf bank_mask:0xf bound_ctrl:0")
        A(f"  v_add_f32_dpp v41, v41, v41 {ctl} row_mask:0xf bank_mask:0xf bound_ctrl:0")
    A(f"""  s_nop 1
  v_readlane_b32 s60, v40, 15
  v_readlane_b32 s61, v40, 31
  v_readlane_b32 s62, v40, 47
  v_readlane_b32 s63, v40, 63
  v_readlane_b32 s56, v41, 15
  v_readlane_b32 s57, v41, 31
  v_readlane_b32 s58, v41, 47
  v_readlane_b32 s59, v41, 63
  s_nop 1
  v_mov_b32 v44, s60
  v_add_f32 v44, s61, v44
  v_add_f32 v44, s62, v44
  v_add_f32 v44, s63, v44
  v_mov_b32 v45, s56
  v_add_f32 v45, s57, v45
  v_add_f32 v45, s58, v45
  v_add_f32 v45, s59, v45
  v_cmp_eq_u32 vcc, 1, v0
  s_nop 1
  v_cndmask_b32 v44, v44, v45, vcc
  v_mul_f32 v44, 0xbfb8aa3b, v44               ; -log2e * z
  v_exp_f32 v44, v44
  s_nop 0
  v_add_f32 v44, 1.0, v44
  v_rcp_f32 v44, v44
  s_lshl_b32 s60, s30, 2
  v_lshlrev_b32 v45, 2, v0
  v_add_u32 v45, s60, v45
  v_add_u32 v45, {hex(WS_G)}, v45
  v_cmp_gt_u32 vcc, 2, v0
  s_and_saveexec_b64 s[48:49], vcc
  buffer_store_dword v44, v45, s[20:23], 0 offen""")
    stamp_flush(A, 0, "s81", 8)
    A("  s_endpgm")
    A(f"{name}_compute:")
    ACC = 64
    VACC = 192
    XA = [2, 3, 4, 5]
    XBr = [6, 7, 8, 9]
    WA = [10, 11, 12, 13, 14]
    F = [[208, 212, 216, 220, 224, 228, 232], [16, 20, 24, 28, 32, 36, 40]]
    A(f"""
  s_lshr_b32 s30, s24, 1                       ; i
  s_and_b32 s31, s24, 1                        ; j
  v_and_b32 v48, 31, v0                        ; token
  v_lshrrev_b32 v49, 5, v0                     ; hh
  v_lshrrev_b32 v50, 1, v48
  v_and_b32 v50, 7, v50                        ; f
  s_lshl_b32 s32, s30, 1
  s_add_u32 s32, s32, s31                      ; tile a = 2i+j
  s_xor_b32 s33, s32, 1                        ; tile b
  s_lshl_b32 s34, s32, 12
  s_lshl_b32 s35, s33, 12
  v_lshlrev_b32 v51, 7, v48""")
    for s in range(4):
        A(f"  v_add_u32 v52, {2*s}, v49")
        A(f"  v_xor_b32 v52, v52, v50")
        A(f"  v_lshl_add_u32 v52, v52, 4, v51")
        A(f"  v_add_u32 v{XA[s]}, s34, v52")
        A(f"  v_add_u32 v{XBr[s]}, s35, v52")
    A(f"""
  v_and_b32 v48, 15, v0                        ; i16
  v_lshrrev_b32 v50, 4, v0
  v_and_b32 v50, 1, v50                        ; u / gu
  v_mul_u32_u24 v51, 1536, v49
  v_lshrrev_b32 v52, 2, v48
  v_lshl_add_u32 v51, v52, 5, v51
  v_and_b32 v52, 3, v48
  v_lshl_add_u32 v51, v52, 3, v51              ; common
  v_lshl_add_u32 v53, v50, 7, v51
  v_add_u32 v53, {XB}, v53
  v_add_u32 v{WA[4]}, 512, v53
  v_mul_u32_u24 v54, {WB}, v50
  v_add_u32 v54, v54, v51
  v_add_u32 v54, {XB+WB}, v54
  s_cmp_eq_u32 s31, 0
  s_cbranch_scc0 {name}_wj1
  v_mov_b32 v{WA[0]}, v53                      ; Q
  v_add_u32 v{WA[1]}, 256, v53                 ; K
  v_xor_b32 v55, 0, v50
  v_lshl_add_u32 v{WA[2]}, v55, 7, v54         ; F0
  v_xor_b32 v55, 1, v50
  v_lshl_add_u32 v{WA[3]}, v55, 7, v54         ; F1
  s_branch {name}_wdone
{name}_wj1:""")
    for t in range(4):
        A(f"  v_xor_b32 v55, {2+t}, v50\n  v_lshl_add_u32 v{WA[t]}, v55, 7, v54")
    A(f"{name}_wdone:")
    for r in range(144): A(f"  v_mov_b32 v{64+r}, 0")
    def rd_list(buf, s):
        L = [f"  ds_read_b128 {vr(F[buf][0],4)}, v{XA[s]}", f"  ds_read_b128 {vr(F[buf][1],4)}, v{XBr[s]}"]
        for t in range(5):
            L.append(f"  ds_read_b64_tr_b16 {vr(F[buf][2+t],2)}, v{WA[t]} offset:{s*3072}")
            L.append(f"  ds_read_b64_tr_b16 {vr(F[buf][2+t]+2,2)}, v{WA[t]} offset:{s*3072 + 768}")
        return L
    def mf_list(buf):
        L = []
        for t in range(4):
            for x in range(2):
                a = vr(ACC + 32*t + 16*x, 16)
                L.append(f"  {MFMA} {a}, {vr(F[buf][2+t],4)}, {vr(F[buf][x],4)}, {a}")
        L.append(f"  {MFMA} {vr(VACC,16)}, {vr(F[buf][0],4)}, {vr(F[buf][6],4)}, {vr(VACC,16)}")
        return L
    def interleave(mf, rd):
        k = 0
        for i, m in enumerate(mf):
            A(m)
            n = 2 if i < 6 else 0
            for _ in range(n):
                if k < len(rd): A(rd[k]); k += 1
        while k < len(rd): A(rd[k]); k += 1
    def advance(kc):
        d = STG if ((kc+1) % NST) != 0 else -(NST-1)*STG
        for r in XA + XBr + WA:
            if d > 0: A(f"  v_add_u32 v{r}, {d}, v{r}")
            else: A(f"  v_subrev_u32 v{r}, {-d}, v{r}")
    stamp(A, 1)
    A("  s_barrier")
    stamp(A, 2)
    for l in rd_list(0, 0): A(l)
    for kc in range(8):
        for s in range(4):
            b = s & 1
            A("  s_waitcnt lgkmcnt(0)")
            if s < 3:
                interleave(mf_list(b), rd_list(b ^ 1, s + 1))
            else:
                if kc < 7:
                    advance(kc)
                    A("  s_barrier")
                    interleave(mf_list(b), rd_list(0, 0))
                else:
                    interleave(mf_list(b), [])
    stamp(A, 3)
    A(f"""
  s_nop 7
  v_lshlrev_b32 v2, 4, v0                      ; lane*16
  s_lshl_b32 s36, s26, 2
  s_add_u32 s37, s36, s32
  s_add_u32 s38, s36, s33
  v_and_b32 v3, 15, v0
  v_lshlrev_b32 v3, 4, v3
  v_lshrrev_b32 v4, 5, v0
  v_lshl_add_u32 v3, v4, 8, v3
  v_lshrrev_b32 v4, 4, v0
  v_and_b32 v4, 1, v4
  v_lshl_add_u32 v3, v4, 16, v3
  s_lshl_b32 s39, s27, 7                       ; (2cg)*64
  s_add_u32 s40, s39, s37
  s_lshl_b32 s40, s40, 10
  s_add_u32 s41, s39, s38
  s_lshl_b32 s41, s41, 10
  s_add_u32 s42, s40, {hex(WS_VF)}""")
    for r in range(8): A(f"  v_cvt_pk_bf16_f32 v{16+r}, v{VACC+2*r}, v{VACC+2*r+1}")
    A(f"""
  buffer_store_dwordx4 v[16:19], v3, s[20:23], s42 offen
  buffer_store_dwordx4 v[20:23], v3, s[20:23], s42 offen offset:512""".replace("s[20:23]", "s[44:47]"))
    return_marker = len(A.lines)
    A(f"""
  s_mov_b32 s50, 0xbfb8aa3b
  s_mul_i32 s51, s27, 6
  s_cmp_eq_u32 s31, 0
  s_cbranch_scc0 {name}_epi_j1""")
    A(f"  s_mov_b32 s33, {hex(f2u(QSCALE))}")
    for x, so in ((0, 40), (1, 41)):
        a = ACC + 16*x
        for r in range(16): A(f"  v_mul_f32 v{a+r}, s33, v{a+r}")
        for r in range(8): A(f"  v_cvt_pk_bf16_f32 v{24+r}, v{a+2*r}, v{a+2*r+1}")
        A(f"  s_add_u32 s34, s{so}, {hex(WS_QF)}\n  s_add_u32 s35, s34, 65536")
        A(f"  buffer_store_dwordx4 v[24:27], v2, s[44:47], s34 offen\n  buffer_store_dwordx4 v[28:31], v2, s[44:47], s35 offen")
        a = ACC + 32 + 16*x
        for r in range(8): A(f"  v_cvt_pk_bf16_f32 v{32+r}, v{a+2*r}, v{a+2*r+1}")
        A(f"  s_add_u32 s34, s{so}, {hex(WS_KF)}\n  s_add_u32 s35, s34, 65536")
        A(f"  buffer_store_dwordx4 v[32:35], v2, s[44:47], s34 offen\n  buffer_store_dwordx4 v[36:39], v2, s[44:47], s35 offen")
    def silu_tile(t, slab_off, uid):
        Ls = A.newlabel(name + "_skip")
        A(f"  s_add_u32 s53, s51, {slab_off}\n  s_cmp_ge_u32 s53, 86\n  s_cbranch_scc1 {Ls}")
        for x, tt in ((0, 37), (1, 38)):
            a = ACC + 32*t + 16*x
            for r in range(8): A(f"  v_mul_f32 v{40+r}, s50, v{a+r}")
            for r in range(8): A(f"  v_exp_f32 v{40+r}, v{40+r}")
            for r in range(8): A(f"  v_mul_f32 v{a+8+r}, v{a+r}, v{a+8+r}")
            for r in range(8): A(f"  v_add_f32 v{40+r}, 1.0, v{40+r}")
            for r in range(8): A(f"  v_rcp_f32 v{40+r}, v{40+r}")
            A(f"  s_mul_i32 s54, s{tt}, 86\n  s_add_u32 s54, s54, s53\n  s_lshl_b32 s54, s54, 10\n  s_add_u32 s54, s54, {hex(WS_HF)}")
            for r in range(8): A(f"  v_mul_f32 v{40+r}, v{a+8+r}, v{40+r}")
            d = 48 + 4*x
            for r in range(4): A(f"  v_cvt_pk_bf16_f32 v{d+r}, v{40+2*r}, v{41+2*r}")
            A(f"  buffer_store_dwordx4 {vr(d,4)}, v2, s[44:47], s54 offen")
        A(f"{Ls}:")
    silu_tile(2, 0, "a"); silu_tile(3, 1, "b")
    A(f"  s_branch {name}_epi_done\n{name}_epi_j1:")
    for t in range(4): silu_tile(t, 2 + t, "c")
    A(f"{name}_epi_done:")
    stamp_flush(A, 0, "s81", 8)
    A(f"{name}_end:\n  s_endpgm")
    idx = A.lines.index(f"{name}_compute:")
    B = Asm(); B("  s_waitcnt lgkmcnt(0)"); srd(B, 44, 8, WS_TOTAL)
    A.lines[idx+1:idx+1] = B.lines
    return kernel_desc(name, 256, 96)
```

```python
from common import *
import asmlib
from asmlib import stamp, stamp_init, stamp_flush
import os, splitk
GPRIO = int(os.environ.get('GPRIO', '0'))
APRIO = int(os.environ.get('APRIO', '1'))
PRIO = os.environ.get("PRIO", "v0")
STG = 40960; NST = 3
APART = 65536
LDS_K2 = 163840
PART_W = 8*3*1024
Q = 32; O = 64; S = [192, 208]; P = 224; KB = [16, 20]; VB = [24, 232]; M = 240
ORDER = "e0 p7 e1 e2 e3 Bp L1 c0 e4 e5 c1 e6 e7 c2 e8 W S L2 e9 c3 e10 e11 c4 e12 e13 A c5 e14 e15 c6"
def attn_step(A, kb, jq):
    b = jq & 1; So, Sn = S[b], S[b ^ 1]
    pj = (jq - 1) % 8; pkb = kb if jq > 0 else kb ^ 1
    nj = (jq + 1) % 8; nkb = kb if jq < 7 else kb ^ 1
    for tok in ORDER.split():
        if tok[0] == 'e':
            i = int(tok[1:]); A(f"  v_exp_f32 v{So+i}, v{So+i}")
        elif tok[0] == 'c':
            i = int(tok[1:]); A(f"  v_cvt_pk_bf16_f32 v{P+i}, v{So+2*i}, v{So+2*i+1}")
        elif tok[0] == 'p':
            i = int(tok[1:]); A(f"  v_cvt_pk_bf16_f32 v{P+i}, v{Sn+2*i}, v{Sn+2*i+1}")
        elif tok == 'S':
            A(f"  {MFMA} {vr(Sn,16)}, {vr(KB[nkb],4)}, {vr(Q+4*nj,4)}, 0")
        elif tok == 'A':
            A(f"  {MFMA} {vr(O+16*jq,16)}, {vr(VB[kb],4)}, {vr(P,4)}, {vr(O+16*jq,16)}")
        elif tok == 'Bp':
            A(f"  {MFMA} {vr(O+16*pj,16)}, {vr(VB[pkb]+4,4)}, {vr(P+4,4)}, {vr(O+16*pj,16)}")
        elif tok == 'L1':
            if jq == 0:
                A(f"  buffer_load_dwordx4 {vr(KB[kb^1],4)}, v1, s[20:23], s30 offen")
        elif tok == 'L2':
            if jq == 0:
                A(f"  s_mov_b64 exec, s[36:37]")
                A(f"  buffer_load_dwordx4 {vr(VB[kb^1],4)}, v2, s[20:23], s31 offen")
                A(f"  buffer_load_dwordx4 {vr(VB[kb^1]+4,4)}, v2, s[20:23], s31 offen offset:512")
                A(f"  s_mov_b64 exec, -1")
                A(f"  s_add_u32 s30, s30, 1024")
                A(f"  s_add_u32 s31, s31, 1024")
        elif tok == 'W':
            if jq == 7: A("  s_waitcnt vmcnt(0)")
        else: raise Exception(tok)
def gen_attn(A, name):
    A(f"""
  s_setprio {APRIO}
  v_lshlrev_b32 v1, 4, v0                      ; lane*16
  v_and_b32 v2, 15, v0
  v_lshlrev_b32 v2, 4, v2
  v_lshrrev_b32 v3, 5, v0
  v_lshl_add_u32 v2, v3, 8, v2                 ; hh*256 + d*16
  s_mov_b32 s36, 0x0000ffff
  s_mov_b32 s37, 0x0000ffff
  s_lshl_b32 s33, s28, 16                      ; head*64*1024
  s_lshl_b32 s34, s29, 13                      ; qb*8*1024
  s_add_u32 s34, s34, s33
  s_add_u32 s34, s34, {hex(WS_QF)}""")
    for j in range(8):
        A(f"  buffer_load_dwordx4 {vr(Q+4*j,4)}, v1, s[20:23], s34 offen" + (f" offset:{(j%4)*1024}" if j % 4 else ""))
        if j == 3: A("  s_add_u32 s34, s34, 4096")
    A(f"""
  s_lshl_b32 s35, s24, 14
  s_add_u32 s35, s35, s33
  s_add_u32 s32, s35, {hex(WS_KF)}
  s_add_u32 s35, s35, {hex(WS_VF)}             ; V base
  v_mov_b32 v4, 0x3f803f80
  v_and_b32 v5, 16, v0
  v_cmp_ne_u32 vcc, 0, v5
  v_mov_b32 v5, 0
  s_nop 0
  v_cndmask_b32 v4, v5, v4, vcc""")
    for b in range(2):
        for r in range(8): A(f"  v_mov_b32 v{VB[b]+r}, v4")
    A(f"""
  buffer_load_dwordx4 {vr(KB[0],4)}, v1, s[20:23], s32 offen
  s_mov_b64 exec, s[36:37]
  buffer_load_dwordx4 {vr(VB[0],4)}, v2, s[20:23], s35 offen
  buffer_load_dwordx4 {vr(VB[0]+4,4)}, v2, s[20:23], s35 offen offset:512
  s_mov_b64 exec, -1
  s_add_u32 s30, s32, 1024
  s_add_u32 s31, s35, 1024""")
    for r in range(128): A(f"  v_mov_b32 v{O+r}, 0")
    for r in range(8): A(f"  v_mov_b32 v{P+r}, 0")
    for r in range(8): A(f"  v_mov_b32 v{M+r}, 0")
    A(f"  v_mov_b32 v{S[1]+14}, 0\n  v_mov_b32 v{S[1]+15}, 0")
    A(f"""
  s_waitcnt vmcnt(0)""")
    stamp(A, 1)
    A(f"""
  {MFMA} {vr(S[0],16)}, {vr(KB[0],4)}, {vr(Q,4)}, 0
  s_mov_b32 s38, 0
  s_nop 7
  s_nop 3
.p2align 6
{name}_aloop:""")
    for kb in range(2):
        for jq in range(8): attn_step(A, kb, jq)
    A(f"""
  s_add_u32 s38, s38, 1
  s_cmp_lt_u32 s38, 8
  s_cbranch_scc1 {name}_aloop
  v_cvt_pk_bf16_f32 v{P+7}, v{S[1]+14}, v{S[1]+15}
  s_nop 1
  {MFMA} {vr(O+16*7,16)}, {vr(VB[1]+4,4)}, {vr(P+4,4)}, {vr(O+16*7,16)}
  s_nop 7
  s_nop 7""")
    stamp(A, 2)
    A(f"  v_mov_b32 v4, 0")
    A(f"  v_mov_b32 v5, 0")
    for j in range(8):
        for r in range(8):
            A(f"  v_fma_f32 v4, v{O+16*j+r}, v5, v4")
    A(f"""
  s_mov_b32 s40, 0x1f800000                    ; 2^-64
  s_mov_b32 s41, 0x5f800000                    ; 2^64
  v_cmp_eq_f32 vcc, v4, v4
  s_mov_b64 s[42:43], vcc""")
    for j in range(8):
        A(f"""  v_cmp_le_f32 vcc, s40, v{O+16*j+8}
  s_and_b64 s[42:43], s[42:43], vcc
  v_cmp_ge_f32 vcc, s41, v{O+16*j+8}
  s_and_b64 s[42:43], s[42:43], vcc""")
    A(f"""
  s_cmp_eq_u64 s[42:43], exec
  s_cbranch_scc1 {name}_adone""")
    for r in range(8): A(f"  v_mov_b32 v{M+r}, 0xff800000")
    A(f"""
  s_mov_b32 s38, 0
  s_mov_b32 s30, s32
{name}_fb1:
  buffer_load_dwordx4 {vr(KB[0],4)}, v1, s[20:23], s30 offen
  s_waitcnt vmcnt(0)""")
    for j in range(8):
        A(f"  {MFMA} {vr(S[0],16)}, {vr(KB[0],4)}, {vr(Q+4*j,4)}, 0")
        A("  s_nop 7\n  s_nop 7")
        for r in range(0, 16, 2):
            A(f"  v_max3_f32 v{M+j}, v{S[0]+r}, v{S[0]+r+1}, v{M+j}")
    A(f"""
  s_add_u32 s30, s30, 1024
  s_add_u32 s38, s38, 1
  s_cmp_lt_u32 s38, 16
  s_cbranch_scc1 {name}_fb1""")
    for j in range(8):
        A(f"  v_mov_b32 v4, v{M+j}")
        A(f"  s_nop 1")
        A(f"  v_permlane32_swap_b32 v4, v{M+j}")
        A(f"  s_nop 1")
        A(f"  v_max_f32 v{M+j}, v4, v{M+j}")
    for r in range(128): A(f"  v_mov_b32 v{O+r}, 0")
    A(f"""
  s_mov_b32 s38, 0
  s_mov_b32 s30, s32
  s_mov_b32 s31, s35
{name}_fb2:
  buffer_load_dwordx4 {vr(KB[0],4)}, v1, s[20:23], s30 offen
  s_mov_b64 exec, s[36:37]
  buffer_load_dwordx4 {vr(VB[0],4)}, v2, s[20:23], s31 offen
  buffer_load_dwordx4 {vr(VB[0]+4,4)}, v2, s[20:23], s31 offen offset:512
  s_mov_b64 exec, -1
  s_waitcnt vmcnt(0)""")
    for j in range(8):
        A(f"  {MFMA} {vr(S[0],16)}, {vr(KB[0],4)}, {vr(Q+4*j,4)}, 0")
        A("  s_nop 7\n  s_nop 7")
        for r in range(16): A(f"  v_sub_f32 v{S[0]+r}, v{S[0]+r}, v{M+j}")
        for r in range(16): A(f"  v_exp_f32 v{S[0]+r}, v{S[0]+r}")
        A("  s_nop 0")
        for r in range(8): A(f"  v_cvt_pk_bf16_f32 v{P+r}, v{S[0]+2*r}, v{S[0]+2*r+1}")
        A("  s_nop 1")
        A(f"  {MFMA} {vr(O+16*j,16)}, {vr(VB[0],4)}, {vr(P,4)}, {vr(O+16*j,16)}")
        A(f"  {MFMA} {vr(O+16*j,16)}, {vr(VB[0]+4,4)}, {vr(P+4,4)}, {vr(O+16*j,16)}")
    A(f"""
  s_add_u32 s30, s30, 1024
  s_add_u32 s31, s31, 1024
  s_add_u32 s38, s38, 1
  s_cmp_lt_u32 s38, 16
  s_cbranch_scc1 {name}_fb2
  s_nop 7
  s_nop 7
{name}_adone:""")
    stamp(A, 3)
    A(f"""
  s_mul_i32 s40, s24, {PART_W}
  s_add_u32 s40, s40, {APART}
  v_add_u32 v4, s40, v1
  v_lshlrev_b32 v5, 3, v0
  v_add_u32 v5, s40, v5""")
    for j in range(8):
        A(f"  v_mov_b32 v{O+16*j+9}, v{M+j}")
        A(f"  ds_write_b128 v4, {vr(O+16*j,4)} offset:{j*3072}")
        A(f"  ds_write_b128 v4, {vr(O+16*j+4,4)} offset:{j*3072+1024}")
        A(f"  ds_write_b64 v5, {vr(O+16*j+8,2)} offset:{j*3072+2048}")
    A(f"""
  s_waitcnt lgkmcnt(0)
  s_barrier                                    ; barrier #2
  s_mul_i32 s40, s24, {2*3072}
  s_add_u32 s40, s40, {APART}
  v_add_u32 v4, s40, v1
  v_lshlrev_b32 v5, 3, v0
  v_add_u32 v5, s40, v5
  s_lshl_b32 s41, s29, 3                       ; qb*8
  s_lshl_b32 s42, s24, 1
  s_add_u32 s41, s41, s42
  s_lshl_b32 s41, s41, 5
  s_add_u32 s41, s41, s28                      ; *32 + head
  s_lshl_b32 s41, s41, 10
  s_add_u32 s41, s41, {hex(WS_OF)}""")
    for t in range(2):
        R = 64
        A(f"  v_add_u32 v6, {2*PART_W}, v4\n  v_add_u32 v7, {2*PART_W}, v5")
        for w in range(4):
            a4, a5 = ("v4", "v5") if w < 2 else ("v6", "v7")
            o = (w % 2)*PART_W + t*3072
            A(f"  ds_read_b128 {vr(R+12*w,4)}, {a4} offset:{o}")
            A(f"  ds_read_b128 {vr(R+12*w+4,4)}, {a4} offset:{o+1024}")
            A(f"  ds_read_b64 {vr(R+12*w+8,2)}, {a5} offset:{o+2048}")
        A("  s_waitcnt lgkmcnt(0)")
        A(f"  v_max3_f32 v8, v{R+9}, v{R+12+9}, v{R+24+9}")
        A(f"  v_max_f32 v8, v8, v{R+36+9}")
        for w in range(4):
            A(f"  v_sub_f32 v{9+w}, v{R+12*w+9}, v8")
        for w in range(4):
            A(f"  v_exp_f32 v{9+w}, v{9+w}")
        A("  s_nop 0")
        A(f"  v_mul_f32 v13, v9, v{R+8}")
        for w in range(1, 4): A(f"  v_fmac_f32 v13, v{9+w}, v{R+12*w+8}")
        A("  v_rcp_f32 v13, v13")
        for r in range(8):
            A(f"  v_mul_f32 v{16+r}, v9, v{R+r}")
            for w in range(1, 4): A(f"  v_fmac_f32 v{16+r}, v{9+w}, v{R+12*w+r}")
        for r in range(8): A(f"  v_mul_f32 v{16+r}, v13, v{16+r}")
        for r in range(4): A(f"  v_cvt_pk_bf16_f32 v{24+4*t+r}, v{16+2*r}, v{17+2*r}")
        A(f"  buffer_store_dwordx4 {vr(24+4*t,4)}, v1, s[20:23], s41 offen")
        if t == 0: A(f"  s_add_u32 s41, s41, {32*1024}")
    stamp_flush(A, 1, "s81", 10)
    A("  s_endpgm")
def gen_down(A, name):
    ACC = 64; ACT = 128; WF = [16, 24]
    A(f"""
  s_setprio 3
  s_sub_u32 s24, s24, 4                        ; gw
  s_lshr_b32 s26, s25, 1
  s_lshl_b32 s26, s26, 3
  s_lshr_b32 s27, s2, 3
  s_and_b32 s27, s27, 7
  s_add_u32 s26, s26, s27                      ; tb
  s_and_b32 s27, s25, 1
  s_lshl_b32 s27, s27, 2
  s_lshr_b32 s30, s2, 6
  s_add_u32 s27, s27, s30                      ; nb
  s_mul_i32 s33, s24, 22
  s_cmp_eq_u32 s24, 3
  s_cselect_b32 s30, 1, 0
  s_sub_u32 s33, s33, s30
  s_cmp_ge_u32 s24, 2
  s_cselect_b32 s34, 21, 22
  s_lshl_b32 s35, s33, 14
  s_lshl_b32 s36, s27, 7
  s_add_u32 s35, s35, s36                      ; W soffset
  s_mul_i32 s36, s26, 172                      ; 2*tb*86
  s_add_u32 s36, s36, s33
  s_lshl_b32 s36, s36, 10
  s_add_u32 s36, s36, {hex(WS_HF)}
  s_mov_b32 s37, {86*1024}
  s_lshl_b32 s38, s24, 14
  s_mov_b32 s42, 0x40000000""")
    splitk.lane_setup(A)
    A(f"""
  v_and_b32 v5, 31, v0
  v_lshlrev_b32 v5, 2, v5
  s_lshl_b32 s39, s26, 8
  s_add_u32 s39, s39, {hex(WS_G)}
  buffer_load_dword v8, v5, s[20:23], s39 offen
  buffer_load_dword v9, v5, s[20:23], s39 offen offset:128""")
    for r in range(64): A(f"  v_mov_b32 v{ACC+r}, 0")
    A(f"  s_setprio {GPRIO}")
    stamp(A, 1)
    splitk.gemm(A, 22, 8, ACC, ACT, WF, True, after_first_wait=lambda: stamp(A, 2))
    stamp(A, 3)
    A(f"""
  s_setprio 3
  v_sub_f32 v8, 1.0, v8
  v_sub_f32 v9, 1.0, v9
  s_nop 7
  s_nop 7""")
    for t in range(2):
        for u in range(2):
            for r in range(16): A(f"  v_mul_f32 v{ACC+16*(2*t+u)+r}, v{8+u}, v{ACC+16*(2*t+u)+r}")
    A("  v_add_u32 v5, s38, v3")
    for tile in range(4):
        for q in range(4):
            A(f"  ds_write_b128 v5, {vr(ACC+16*tile+4*q,4)} offset:{tile*4096+q*1024}")
    A("  s_waitcnt lgkmcnt(0)")
    stamp(A, 4)
    A(f"""
  s_barrier                                    ; barrier #1
  s_lshl_b32 s40, s24, 12
  v_add_u32 v5, s40, v3""")
    for w in range(4):
        for q in range(4):
            A(f"  ds_read_b128 {vr(64+16*w+4*q,4)}, v5 offset:{w*16384+q*1024}")
    A("  s_waitcnt lgkmcnt(0)")
    for r in range(16):
        for w in range(1, 4): A(f"  v_add_f32 v{64+r}, v{64+r}, v{64+16*w+r}")
    A(f"""
  s_lshl_b32 s40, s26, 3
  s_add_u32 s40, s40, s27
  s_lshl_b32 s40, s40, 14                      ; *16KB
  s_lshl_b32 s41, s24, 12
  s_add_u32 s40, s40, s41
  s_add_u32 s40, s40, {hex(WS_BF)}
  v_lshlrev_b32 v5, 5, v0
  buffer_store_dwordx4 v[64:67], v5, s[20:23], s40 offen
  buffer_store_dwordx4 v[68:71], v5, s[20:23], s40 offen offset:16
  buffer_store_dwordx4 v[72:75], v5, s[20:23], s40 offen offset:2048
  buffer_store_dwordx4 v[76:79], v5, s[20:23], s40 offen offset:2064""")
    stamp_flush(A, 1, "s81", 10)
    A("  s_endpgm")
def gen_k2(A, name="k2_kernel"):
    kernel_begin(A, name)
    stamp_init(A)
    A(f"""
  s_cmp_ge_u32 s2, 256
  s_cbranch_scc1 {name}_end
  s_load_dwordx2 s[4:5], s[0:1], {KA_WD}
""")
    A(f"""
  s_load_dwordx2 s[10:11], s[0:1], {KA_WS}
  v_lshrrev_b32 v1, 6, v0
  v_and_b32 v0, 63, v0
  s_and_b32 s25, s2, 7
  s_lshr_b32 s27, s2, 3
  v_readfirstlane_b32 s24, v1
  s_and_b32 s27, s27, 3                        ; (c>>3)&3
  s_lshl_b32 s28, s25, 2
  s_add_u32 s28, s28, s27                      ; head = j*4 + ((c>>3)&3)
  s_lshr_b32 s29, s2, 5                        ; qb
  s_and_b32 s26, s25, 3
  s_lshl_b32 s26, s26, 2
  s_add_u32 s26, s26, s27                      ; rb
  s_lshr_b32 s27, s25, 2
  s_lshl_b32 s27, s27, 3
  s_add_u32 s27, s27, s29                      ; cg
  s_waitcnt lgkmcnt(0)""")
    if asmlib.STAMPS: A("  s_mov_b32 s81, s24")
    srd(A, 12, 4, 1376*1024)
    srd(A, 20, 10, WS_TOTAL)
    A(f"""
  s_cmp_ge_u32 s24, 4
  s_cbranch_scc1 {name}_g""")
    gen_attn(A, name)
    A(f"{name}_g:")
    gen_down(A, name)
    A(f"{name}_end:\n  s_endpgm")
    return kernel_desc(name, 256, 96)
```

```python
from common import *
import asmlib, splitk
from asmlib import stamp, stamp_init, stamp_flush
LDS_K3 = 8*16384
def gen_k3(A, name="k3_kernel"):
    kernel_begin(A, name)
    stamp_init(A)
    ACC = 64; ACT = 128; WF = [16, 24]
    A(f"""
  s_cmp_ge_u32 s2, 256
  s_cbranch_scc1 {name}_end
  s_load_dwordx2 s[4:5], s[0:1], {KA_WO}
  s_load_dwordx2 s[8:9], s[0:1], {KA_OUT}
  s_load_dwordx2 s[10:11], s[0:1], {KA_WS}
  v_lshrrev_b32 v1, 6, v0
  v_and_b32 v0, 63, v0
  s_and_b32 s25, s2, 7
  s_lshr_b32 s27, s2, 3
  v_readfirstlane_b32 s24, v1
  s_lshr_b32 s26, s25, 1
  s_lshl_b32 s26, s26, 3
  s_and_b32 s27, s27, 7
  s_add_u32 s26, s26, s27                      ; tb = (j>>1)*8 + ((c>>3)&7)
  s_and_b32 s27, s25, 1
  s_lshl_b32 s27, s27, 2
  s_lshr_b32 s28, s2, 6
  s_add_u32 s27, s27, s28                      ; nb = (j&1)*4 + (c>>6)
  s_lshl_b32 s35, s24, 16
  s_lshl_b32 s36, s27, 7
  s_add_u32 s35, s35, s36
  s_lshl_b32 s36, s26, 6
  s_lshl_b32 s33, s24, 2
  s_add_u32 s36, s36, s33
  s_lshl_b32 s36, s36, 10
  s_add_u32 s36, s36, {hex(WS_OF)}
  s_mov_b32 s37, {32*1024}
  s_lshl_b32 s38, s24, 14""")
    if asmlib.STAMPS: A("  s_mov_b32 s81, s24")
    splitk.lane_setup(A)
    A("  s_waitcnt lgkmcnt(0)")
    srd(A, 12, 4, 512*1024)
    srd(A, 20, 10, WS_TOTAL)
    srd(A, 16, 8, 2048*1024)
    for r in range(64): A(f"  v_mov_b32 v{ACC+r}, 0")
    def extra():
        pass
    A(f"""
  v_and_b32 v5, 31, v0
  v_lshlrev_b32 v5, 2, v5
  s_lshl_b32 s39, s26, 8
  s_add_u32 s39, s39, {hex(WS_G)}
  buffer_load_dword v8, v5, s[20:23], s39 offen
  buffer_load_dword v9, v5, s[20:23], s39 offen offset:128
  s_lshl_b32 s40, s26, 3
  s_add_u32 s40, s40, s27
  s_lshl_b32 s40, s40, 14
  s_lshl_b32 s41, s24, 11
  s_add_u32 s40, s40, s41
  s_add_u32 s40, s40, {hex(WS_BF)}
  v_lshlrev_b32 v5, 5, v0
  buffer_load_dwordx4 v[40:43], v5, s[20:23], s40 offen
  buffer_load_dwordx4 v[44:47], v5, s[20:23], s40 offen offset:16""")
    stamp(A, 1)
    splitk.gemm(A, 4, 4, ACC, ACT, WF, False, after_first_wait=lambda: stamp(A, 2))
    stamp(A, 3)
    A("  s_nop 7\n  s_nop 7")
    for t in range(2):
        for u in range(2):
            for r in range(16): A(f"  v_mul_f32 v{ACC+16*(2*t+u)+r}, v{8+u}, v{ACC+16*(2*t+u)+r}")
    A(f"""
  v_add_u32 v5, s38, v3""")
    for tile in range(4):
        for q in range(4):
            A(f"  ds_write_b128 v5, {vr(ACC+16*tile+4*q,4)} offset:{tile*4096+q*1024}")
    A(f"""
  s_waitcnt lgkmcnt(0)
  s_barrier
  s_lshl_b32 s40, s24, 11                      ; (w>>1)*4096 + (w&1)*2048
  v_add_u32 v5, s40, v3
  v_add_u32 v6, 65536, v5""")
    for w in range(8):
        a = "v5" if w < 4 else "v6"
        A(f"  ds_read_b128 {vr(64+8*w,4)}, {a} offset:{(w%4)*16384}")
        A(f"  ds_read_b128 {vr(64+8*w+4,4)}, {a} offset:{(w%4)*16384+1024}")
    A("  s_waitcnt lgkmcnt(0)")
    for r in range(8):
        A(f"  v_add_f32 v{64+r}, v{64+r}, v{40+r}")
        for w in range(1, 8): A(f"  v_add_f32 v{64+r}, v{64+r}, v{64+8*w+r}")
    A(f"""
  v_cvt_pk_bf16_f32 v16, v64, v65
  v_cvt_pk_bf16_f32 v17, v66, v67
  v_cvt_pk_bf16_f32 v18, v68, v69
  v_cvt_pk_bf16_f32 v19, v70, v71
  s_lshr_b32 s40, s24, 1
  s_and_b32 s41, s40, 1                        ; u
  s_lshr_b32 s40, s40, 1                       ; t
  s_lshl_b32 s42, s26, 6
  s_lshl_b32 s41, s41, 5
  s_add_u32 s42, s42, s41
  s_lshl_b32 s42, s42, 10
  s_lshl_b32 s43, s27, 7
  s_lshl_b32 s40, s40, 6
  s_add_u32 s43, s43, s40
  s_and_b32 s40, s24, 1
  s_lshl_b32 s40, s40, 5
  s_add_u32 s43, s43, s40
  s_add_u32 s42, s42, s43
  v_and_b32 v5, 31, v0
  v_lshlrev_b32 v5, 10, v5
  v_lshrrev_b32 v6, 5, v0
  v_lshl_add_u32 v5, v6, 4, v5
  v_permlane32_swap_b32 v16, v18
  v_permlane32_swap_b32 v17, v19
  s_nop 1
  buffer_store_dwordx4 v[16:19], v5, s[16:19], s42 offen""")
    stamp_flush(A, 2, "s81", 10)
    A(f"{name}_end:\n  s_endpgm")
    return kernel_desc(name, 192, 96)
```

```python
from common import *
def lane_setup(A):
    A(f"""
  v_lshrrev_b32 v2, 5, v0
  v_lshrrev_b32 v3, 1, v0
  v_and_b32 v3, 3, v3
  v_lshl_add_u32 v2, v2, 2, v3
  v_lshlrev_b32 v2, 10, v2
  v_lshrrev_b32 v3, 3, v0
  v_and_b32 v3, 3, v3
  v_lshl_add_u32 v2, v3, 5, v2
  v_and_b32 v3, 1, v0
  v_lshl_add_u32 v2, v3, 4, v2
  v_lshlrev_b32 v3, 4, v0                      ; v3 = lane*16
  v_lshrrev_b32 v4, 5, v0
  v_lshlrev_b32 v4, 9, v4                      ; hh*4*128
  v_lshrrev_b32 v5, 4, v0
  v_and_b32 v5, 1, v5
  v_lshl_add_u32 v4, v5, 7, v4
  v_and_b32 v5, 15, v0
  v_lshrrev_b32 v6, 2, v5
  v_lshl_add_u32 v4, v6, 5, v4
  v_and_b32 v6, 3, v5
  v_lshl_add_u32 v4, v6, 3, v4
  v_add_u32 v4, s38, v4                        ; v4""")
def gemm(A, nstep, D, ACC, ACT, WF, masked, extra_vm=0, after_first_wait=None):
    def issue(s):
        slot = s % D
        if masked:
            A(f"  s_cmp_gt_u32 s34, {s}")
            A(f"  s_cselect_b32 s40, s35, s42")
            A(f"  s_cselect_b32 s41, s36, s42")
            w, a = "s40", "s41"
        else:
            w, a = "s35", "s36"
        A(f"  s_add_u32 m0, s38, {slot*2048}")
        A(f"  s_add_u32 s43, {a}, s37")
        A(f"  buffer_load_dwordx4 v2, s[12:15], {w} offen lds")
        A(f"  s_add_u32 m0, s38, {slot*2048+1024}")
        A(f"  s_add_u32 s44, {w}, 8192")
        A(f"  buffer_load_dwordx4 v2, s[12:15], s44 offen lds")
        A(f"  buffer_load_dwordx4 {vr(ACT+8*slot,4)}, v3, s[20:23], {a} offen")
        A(f"  buffer_load_dwordx4 {vr(ACT+8*slot+4,4)}, v3, s[20:23], s43 offen")
        A(f"  s_add_u32 s35, s35, 16384")
        A(f"  s_add_u32 s36, s36, 1024")
    def trreads(s, buf):
        slot = s % D
        for t in range(2):
            A(f"  ds_read_b64_tr_b16 {vr(WF[buf]+4*t,2)}, v4 offset:{slot*2048 + t*256}")
            A(f"  ds_read_b64_tr_b16 {vr(WF[buf]+4*t+2,2)}, v4 offset:{slot*2048 + t*256 + 1024}")
    issued = min(D, nstep)
    for s in range(issued): issue(s)
    A(f"  s_waitcnt vmcnt({4*(issued-1)})")
    if after_first_wait: after_first_wait()
    trreads(0, 0)
    for s in range(nstep):
        slot = s % D; b = s & 1
        if s + 1 < nstep:
            A(f"  s_waitcnt vmcnt({4*(issued-(s+2))})")
            trreads(s + 1, b ^ 1)
            A("  s_waitcnt lgkmcnt(4)")
        else:
            A("  s_waitcnt lgkmcnt(0)")
        for t in range(2):
            for u in range(2):
                a = vr(ACC+16*(2*t+u), 16)
                A(f"  {MFMA} {a}, {vr(WF[b]+4*t,4)}, {vr(ACT+8*slot+4*u,4)}, {a}")
        if issued < nstep:
            issue(issued); issued += 1
```

```python
import sys
from common import *
import k1
def header(launches):
    h = """; gated_mix__mha_block__swiglu_ffn__prompt : hand-written gfx950 kernels (generated by my own python scripts)
"""
    for (k, g, b, lds) in launches:
        h += f"; @launch kernel={k} grid=({g},1,1) block=({b},1,1) lds={lds}\n"
    h += '.amdgcn_target "amdgcn-amd-amdhsa--gfx950"\n'
    return h
def build(parts):
    A = Asm(); descs = []; launches = []
    for p in parts:
        d, l = p(A)
        descs.append(d); launches.append(l)
    return header(launches) + A.text() + "".join(descs)
def p_k1(A):
    return k1.gen_k1(A), ("k1_kernel", 256, 512, k1.LDS_K1)
if __name__ == "__main__":
    import asmlib
    if "--stamps" in sys.argv:
        asmlib.STAMPS = True; sys.argv.remove("--stamps")
    if "--cycles" in sys.argv:
        asmlib.CLK = "s_memtime"; sys.argv.remove("--cycles")
    parts = [p_k1]
    try:
        import k2
        parts.append(lambda A: (k2.gen_k2(A), ("k2_kernel", 256, 512, k2.LDS_K2)))
    except ImportError: pass
    try:
        import k3
        parts.append(lambda A: (k3.gen_k3(A), ("k3_kernel", 256, 512, k3.LDS_K3)))
    except ImportError: pass
    out = sys.argv[1] if len(sys.argv) > 1 else "gated_mix__mha_block__swiglu_ffn__prompt.s"
    open(out, "w").write(build(parts))
    print("wrote", out)
```

```python
from asmlib import *
KA_AX, KA_WQKV, KA_WO, KA_BX, KA_WG, KA_WU, KA_WD, KA_GW, KA_OUT, KA_DBG, KA_WS = 0, 8, 16, 24, 32, 40, 48, 56, 64, 72, 80
WS_EPOCH = 0x0
WS_F1 = 0x1000
WS_FO = 0x5000
WS_FQ = 0x9000
WS_G  = 0x10000
WS_QF = 0x100000
WS_KF = 0x300000
WS_VF = 0x500000
WS_OF = 0x700000
WS_HF = 0x900000
HF_BYTES = 64*86*1024
WS_BF = 0xF00000
WS_TOTAL = 0x1500000
QSCALE = 0.25 * 1.4426950408889634
import struct
def f2u(x): return struct.unpack("<I", struct.pack("<f", x))[0]
class VmQ:
    def __init__(self): self.q = []
    def issue(self, tag): self.q.append(tag)
    def wait(self, A, tags):
        idx = max((i for i, t in enumerate(self.q) if t in tags), default=-1)
        n = len(self.q) - 1 - idx
        assert n <= 63, n
        A(f"  s_waitcnt vmcnt({n})")
        self.q = self.q[idx+1:]
    def drain(self): self.q = []
```

```python
from common import *
import asmlib, os
from asmlib import stamp, stamp_init, stamp_flush
NST = 3
XB = 16384; WB = 12288
STG = XB + 3*WB
LDS_Z = 163840
LAG = int(os.environ.get("LAG", "8"))
SC = " sc1"
APRIO = int(os.environ.get('APRIO', '1')); GPRIO = int(os.environ.get('GPRIO', '0'))
SPIN_MAX = 1 << 22
NAME = "gated_mix__mha_block__swiglu_ffn__prompt_kernel"

def poll(A, name, vaddr, vtmp, uid):
    A(f"""
  s_mov_b32 s62, 0
{name}_poll{uid}:
  buffer_load_dword v{vtmp}, v{vaddr}, s[20:23], 0 offen sc1
  s_waitcnt vmcnt(0)
  v_cmp_eq_u32 vcc, s3, v{vtmp}
  s_cmp_eq_u64 vcc, exec
  s_cbranch_scc1 {name}_poll{uid}_ok
  s_add_u32 s62, s62, 1
  s_cmp_lt_u32 s62, {SPIN_MAX}
  s_cbranch_scc0 {name}_poll{uid}_ok
  s_sleep 2
  s_branch {name}_poll{uid}
{name}_poll{uid}_ok:""")

def gen_loader(A, name):
    DX = 8; DQ = [9, 10, 11]; DG = [12, 13, 14]; DU = [15, 16, 17]
    A(f"""
  s_sub_u32 s24, s24, 4                        ; lw
  v_lshrrev_b32 v3, 3, v0                      ; l>>3
  v_lshrrev_b32 v4, 4, v0                      ; l>>4
  s_and_b32 s32, s24, 1
  s_lshl_b32 s32, s32, 2
  v_add_u32 v4, s32, v4                        ; f
  v_and_b32 v5, 7, v0
  v_xor_b32 v5, v5, v4                         ; c
  v_lshlrev_b32 v5, 4, v5
  v_lshl_add_u32 v{DX}, v3, 10, v5             ; voff_x
  s_lshl_b32 s34, s26, 17
  s_lshl_b32 s35, s24, 13
  s_add_u32 s34, s34, s35
  s_lshl_b32 s36, s24, 10
  s_waitcnt lgkmcnt(0)""")
    srd(A, 12, 4, 2048*1024)
    def dma_x(kc, n):
        st = (kc % NST) * STG
        A(f"  s_add_u32 m0, s36, {st + n*4096}")
        A(f"  s_add_u32 s38, s34, {n*32768 + kc*128}")
        A(f"  buffer_load_dwordx4 v{DX}, s[12:15], s38 offen lds")
    for n in range(4): dma_x(0, n)
    srd(A, 16, 6, 512*3072)
    srd(A, 40, 52, 512*2752)
    srd(A, 44, 54, 512*2752)
    A(f"""
  v_lshrrev_b32 v4, 1, v0
  v_and_b32 v4, 3, v4                          ; r
  v_and_b32 v5, 1, v0
  v_lshlrev_b32 v5, 4, v5                      ; half*16
  s_lshl_b32 s33, s27, 6
  s_mul_i32 s39, s27, 192""")
    for p in range(3):
        A(f"""
  v_add_u32 v6, {8*p}, v3                      ; b
  v_mul_u32_u24 v7, 43, v6
  v_lshrrev_b32 v7, 8, v7                      ; kgl = b/6
  v_mul_u32_u24 v18, 6, v7
  v_sub_u32 v6, v6, v18                        ; s = b%6
  v_lshl_add_u32 v7, v7, 2, v4
  v_mul_u32_u24 v18, 3072, v7
  v_lshrrev_b32 v19, 1, v6
  v_lshl_add_u32 v18, v19, 10, v18             ; + (s>>1)*1024
  v_and_b32 v19, 1, v6
  v_lshl_add_u32 v18, v19, 5, v18              ; + (s&1)*32
  v_add3_u32 v{DQ[p]}, v18, v5, s33
  v_mul_u32_u24 v18, 2752, v7
  v_add3_u32 v18, v18, v5, s39
  v_lshl_add_u32 v{DG[p]}, v6, 5, v18
  v_xor_b32 v6, 1, v6
  v_lshl_add_u32 v{DU[p]}, v6, 5, v18""")
    A(f"""
  s_mul_i32 s35, s24, {16*3072}
  s_mul_i32 s48, s24, {16*2752}
  s_mul_i32 s37, s24, 3072
  s_add_u32 s37, s37, {XB}""")
    def dma_list(kc):
        st = (kc % NST) * STG
        L = [ (lambda n=n: dma_x(kc, n)) for n in range(4) ]
        for reg, (srdr, pats, sb, rs) in enumerate(((16, DQ, 35, 3072), (40, DG, 48, 2752), (44, DU, 48, 2752))):
            for p in range(3):
                def f(reg=reg, srdr=srdr, pats=pats, sb=sb, rs=rs, p=p):
                    A(f"  s_add_u32 m0, s37, {st + reg*WB + p*1024}")
                    A(f"  s_add_u32 s39, s{sb}, {kc*64*rs}")
                    A(f"  buffer_load_dwordx4 v{pats[p]}, s[{srdr}:{srdr+3}], s39 offen lds")
                L.append(f)
        return L
    stream = []
    for kc in range(8): stream += dma_list(kc)
    pos = [4]
    def issue_upto(n):
        while pos[0] < n:
            stream[pos[0]](); pos[0] += 1
    issue_upto(13)
    A(f"""
  s_lshl_b32 s30, s26, 7
  s_lshl_b32 s31, s27, 3
  s_add_u32 s30, s30, s31
  s_lshl_b32 s31, s24, 1
  s_add_u32 s30, s30, s31                      ; token0
  s_lshl_b32 s31, s30, 10
  v_lshlrev_b32 v2, 4, v0
  buffer_load_dwordx4 v[20:23], v2, s[12:15], s31 offen
  buffer_load_dwordx4 v[24:27], v2, s[12:15], s31 offen offset:1024
  global_load_dwordx4 v[28:31], v2, s[10:11]""")
    stamp(A, 1)
    for i in range(8):
        issue_upto(min(13*(i+1) + LAG, 104))
        younger = pos[0] - 13*(i+1) + (3 if i == 0 else 0)
        A(f"  s_waitcnt vmcnt({younger})")
        A("  s_barrier")
        if i == 1:
            A("""
  v_lshlrev_b32 v32, 16, v28
  v_and_b32 v33, 0xffff0000, v28
  v_lshlrev_b32 v34, 16, v29
  v_and_b32 v35, 0xffff0000, v29
  v_lshlrev_b32 v36, 16, v30
  v_and_b32 v37, 0xffff0000, v30
  v_lshlrev_b32 v38, 16, v31
  v_and_b32 v39, 0xffff0000, v31""")
            for t, base, acc in ((0, 20, 40), (1, 24, 41)):
                for j in range(4):
                    A(f"  v_lshlrev_b32 v42, 16, v{base+j}")
                    A(f"  v_and_b32 v43, 0xffff0000, v{base+j}")
                    if j == 0: A(f"  v_mul_f32 v{acc}, v42, v32")
                    else: A(f"  v_fmac_f32 v{acc}, v42, v{32+2*j}")
                    A(f"  v_fmac_f32 v{acc}, v43, v{33+2*j}")
            for ctl in ("row_shr:1", "row_shr:2", "row_shr:4", "row_shr:8"):
                A("  s_nop 1")
                A(f"  v_add_f32_dpp v40, v40, v40 {ctl} row_mask:0xf bank_mask:0xf bound_ctrl:0")
                A(f"  v_add_f32_dpp v41, v41, v41 {ctl} row_mask:0xf bank_mask:0xf bound_ctrl:0")
            A(f"""  s_nop 1
  v_readlane_b32 s60, v40, 15
  v_readlane_b32 s61, v40, 31
  v_readlane_b32 s62, v40, 47
  v_readlane_b32 s63, v40, 63
  v_readlane_b32 s46, v41, 15
  v_readlane_b32 s47, v41, 31
  v_readlane_b32 s49, v41, 47
  v_readlane_b32 s50, v41, 63
  s_nop 1
  v_mov_b32 v44, s60
  v_add_f32 v44, s61, v44
  v_add_f32 v44, s62, v44
  v_add_f32 v44, s63, v44
  v_mov_b32 v45, s46
  v_add_f32 v45, s47, v45
  v_add_f32 v45, s49, v45
  v_add_f32 v45, s50, v45
  v_cmp_eq_u32 vcc, 1, v0
  s_nop 1
  v_cndmask_b32 v44, v44, v45, vcc             ; lane1 -> token1, others token0
  v_mul_f32 v44, 0xbfb8aa3b, v44               ; -log2e * z
  v_exp_f32 v44, v44
  s_nop 0
  v_add_f32 v44, 1.0, v44
  v_rcp_f32 v44, v44
  s_lshl_b32 s60, s30, 2
  v_lshlrev_b32 v45, 2, v0
  v_add_u32 v45, s60, v45
  v_add_u32 v45, {hex(WS_G)}, v45""".replace("s46", "s51").replace("s47", "s31"))
    A(f"""
  v_cmp_gt_u32 vcc, 2, v0
  s_and_saveexec_b64 s[48:49], vcc
  buffer_store_dword v44, v45, s[20:23], 0 offen{SC}
  s_mov_b64 exec, s[48:49]""")
    stamp(A, 2)
    A("  s_barrier")

ACC = 64; VACC = 192
def gen_p12_compute(A, name):
    XA = [2, 3, 4, 5]; XBr = [6, 7, 8, 9]; WA = [10, 11, 12, 13, 14]
    F = [[208, 212, 216, 220, 224, 228, 232], [16, 20, 24, 28, 32, 36, 40]]
    A("  s_waitcnt lgkmcnt(0)")
    srd(A, 12, 4, 2048*1024)
    srd(A, 16, 6, 512*3072)
    srd(A, 40, 52, 512*2752)
    srd(A, 44, 54, 512*2752)
    A(f"""
  s_and_b32 s30, s27, 7
  s_lshl_b32 s30, s30, 4
  s_lshl_b32 s31, s26, 7
  s_add_u32 s30, s30, s31
  s_lshl_b32 s31, s24, 2
  s_add_u32 s30, s30, s31
  s_lshl_b32 s30, s30, 10
  v_and_b32 v48, 31, v0
  v_lshlrev_b32 v48, 7, v48
  buffer_load_dword v240, v48, s[12:15], s30 offen
  s_and_b32 s30, s26, 3
  s_lshl_b32 s30, s30, 7
  s_lshl_b32 s31, s24, 5
  s_add_u32 s30, s30, s31
  v_and_b32 v48, 31, v0
  v_lshrrev_b32 v49, 5, v0
  v_mul_u32_u24 v50, 3072, v48
  v_lshl_add_u32 v50, v49, 10, v50
  s_mul_i32 s31, s30, 3072
  s_lshl_b32 s32, s27, 6
  s_add_u32 s31, s31, s32
  buffer_load_dword v241, v50, s[16:19], s31 offen
  v_mul_u32_u24 v51, 3072, v48
  s_add_u32 s31, s31, 2048
  s_mov_b32 exec_hi, 0
  buffer_load_dword v242, v51, s[16:19], s31 offen
  s_mov_b32 exec_hi, -1
  v_mul_u32_u24 v50, 2752, v48
  v_lshl_add_u32 v50, v49, 7, v50
  s_mul_i32 s31, s30, 2752
  s_mul_i32 s32, s27, 192
  s_add_u32 s31, s31, s32
  buffer_load_dword v243, v50, s[40:43], s31 offen
  buffer_load_dword v244, v50, s[44:47], s31 offen
  s_lshr_b32 s30, s24, 1                       ; i
  s_and_b32 s31, s24, 1                        ; j
  v_and_b32 v48, 31, v0                        ; token
  v_lshrrev_b32 v49, 5, v0                     ; hh
  v_lshrrev_b32 v50, 1, v48
  v_and_b32 v50, 7, v50                        ; f
  s_lshl_b32 s32, s30, 1
  s_add_u32 s32, s32, s31                      ; tile a = 2i+j
  s_xor_b32 s33, s32, 1                        ; tile b
  s_lshl_b32 s34, s32, 12
  s_lshl_b32 s35, s33, 12
  v_lshlrev_b32 v51, 7, v48""")
    for s in range(4):
        A(f"  v_add_u32 v52, {2*s}, v49")
        A(f"  v_xor_b32 v52, v52, v50")
        A(f"  v_lshl_add_u32 v52, v52, 4, v51")
        A(f"  v_add_u32 v{XA[s]}, s34, v52")
        A(f"  v_add_u32 v{XBr[s]}, s35, v52")
    A(f"""
  v_and_b32 v48, 15, v0                        ; i16
  v_lshrrev_b32 v50, 4, v0
  v_and_b32 v50, 1, v50                        ; u / gu
  v_mul_u32_u24 v51, 1536, v49
  v_lshrrev_b32 v52, 2, v48
  v_lshl_add_u32 v51, v52, 5, v51
  v_and_b32 v52, 3, v48
  v_lshl_add_u32 v51, v52, 3, v51              ; common
  v_lshl_add_u32 v53, v50, 7, v51
  v_add_u32 v53, {XB}, v53
  v_add_u32 v{WA[4]}, 512, v53
  v_mul_u32_u24 v54, {WB}, v50
  v_add_u32 v54, v54, v51
  v_add_u32 v54, {XB+WB}, v54
  s_cmp_eq_u32 s31, 0
  s_cbranch_scc0 {name}_wj1
  v_mov_b32 v{WA[0]}, v53                      ; Q
  v_add_u32 v{WA[1]}, 256, v53                 ; K
  v_xor_b32 v55, 0, v50
  v_lshl_add_u32 v{WA[2]}, v55, 7, v54         ; F0
  v_xor_b32 v55, 1, v50
  v_lshl_add_u32 v{WA[3]}, v55, 7, v54         ; F1
  s_branch {name}_wdone
{name}_wj1:""")
    for t in range(4):
        A(f"  v_xor_b32 v55, {2+t}, v50\n  v_lshl_add_u32 v{WA[t]}, v55, 7, v54")
    A(f"{name}_wdone:")
    for r in range(144): A(f"  v_mov_b32 v{64+r}, 0")
    def rd_list(buf, s):
        L = [f"  ds_read_b128 {vr(F[buf][0],4)}, v{XA[s]}", f"  ds_read_b128 {vr(F[buf][1],4)}, v{XBr[s]}"]
        for t in range(5):
            L.append(f"  ds_read_b64_tr_b16 {vr(F[buf][2+t],2)}, v{WA[t]} offset:{s*3072}")
            L.append(f"  ds_read_b64_tr_b16 {vr(F[buf][2+t]+2,2)}, v{WA[t]} offset:{s*3072 + 768}")
        return L
    def mf_list(buf):
        L = []
        for t in range(4):
            for x in range(2):
                a = vr(ACC + 32*t + 16*x, 16)
                L.append(f"  {MFMA} {a}, {vr(F[buf][2+t],4)}, {vr(F[buf][x],4)}, {a}")
        L.append(f"  {MFMA} {vr(VACC,16)}, {vr(F[buf][0],4)}, {vr(F[buf][6],4)}, {vr(VACC,16)}")
        return L
    def interleave(mf, rd):
        k = 0
        for i, m in enumerate(mf):
            A(m)
            n = 2 if i < 6 else 0
            for _ in range(n):
                if k < len(rd): A(rd[k]); k += 1
        while k < len(rd): A(rd[k]); k += 1
    def advance(kc):
        d = STG if ((kc+1) % NST) != 0 else -(NST-1)*STG
        for r in XA + XBr + WA:
            if d > 0: A(f"  v_add_u32 v{r}, {d}, v{r}")
            else: A(f"  v_subrev_u32 v{r}, {-d}, v{r}")
    stamp(A, 1)
    A("  s_barrier")
    for l in rd_list(0, 0): A(l)
    for kc in range(8):
        for s in range(4):
            b = s & 1
            A("  s_waitcnt lgkmcnt(0)")
            if s < 3:
                interleave(mf_list(b), rd_list(b ^ 1, s + 1))
            else:
                if kc < 7:
                    advance(kc)
                    A("  s_barrier")
                    interleave(mf_list(b), rd_list(0, 0))
                else:
                    A("  s_barrier")
                    interleave(mf_list(b), [])
    stamp(A, 2)
    srd(A, 44, 8, WS_TOTAL)
    A(f"""
  s_nop 7
  v_lshlrev_b32 v2, 4, v0                      ; lane*16
  s_lshl_b32 s36, s26, 2
  s_add_u32 s37, s36, s32
  s_add_u32 s38, s36, s33
  v_and_b32 v3, 15, v0
  v_lshlrev_b32 v3, 4, v3
  v_lshrrev_b32 v4, 5, v0
  v_lshl_add_u32 v3, v4, 8, v3
  v_lshrrev_b32 v4, 4, v0
  v_and_b32 v4, 1, v4
  v_lshl_add_u32 v3, v4, 16, v3
  s_lshl_b32 s39, s27, 7                       ; (2cg)*64
  s_add_u32 s40, s39, s37
  s_lshl_b32 s40, s40, 10
  s_add_u32 s41, s39, s38
  s_lshl_b32 s41, s41, 10
  s_add_u32 s42, s40, {hex(WS_VF)}""")
    for r in range(8): A(f"  v_cvt_pk_bf16_f32 v{16+r}, v{VACC+2*r}, v{VACC+2*r+1}")
    A(f"""
  buffer_store_dwordx4 v[16:19], v3, s[44:47], s42 offen{SC}
  buffer_store_dwordx4 v[20:23], v3, s[44:47], s42 offen offset:512{SC}
  s_mov_b32 s50, 0xbfb8aa3b
  s_mul_i32 s51, s27, 6
  s_cmp_eq_u32 s31, 0
  s_cbranch_scc0 {name}_epi_j1""")
    A(f"  s_mov_b32 s33, {hex(f2u(QSCALE))}")
    for x, so in ((0, 40), (1, 41)):
        a = ACC + 16*x
        for r in range(16): A(f"  v_mul_f32 v{a+r}, s33, v{a+r}")
        for r in range(8): A(f"  v_cvt_pk_bf16_f32 v{24+r}, v{a+2*r}, v{a+2*r+1}")
        A(f"  s_add_u32 s34, s{so}, {hex(WS_QF)}\n  s_add_u32 s35, s34, 65536")
        A(f"  buffer_store_dwordx4 v[24:27], v2, s[44:47], s34 offen{SC}\n  buffer_store_dwordx4 v[28:31], v2, s[44:47], s35 offen{SC}")
        a = ACC + 32 + 16*x
        for r in range(8): A(f"  v_cvt_pk_bf16_f32 v{32+r}, v{a+2*r}, v{a+2*r+1}")
        A(f"  s_add_u32 s34, s{so}, {hex(WS_KF)}\n  s_add_u32 s35, s34, 65536")
        A(f"  buffer_store_dwordx4 v[32:35], v2, s[44:47], s34 offen{SC}\n  buffer_store_dwordx4 v[36:39], v2, s[44:47], s35 offen{SC}")
    def silu_tile(t, slab_off):
        Ls = A.newlabel(name + "_skip")
        A(f"  s_add_u32 s53, s51, {slab_off}\n  s_cmp_ge_u32 s53, 86\n  s_cbranch_scc1 {Ls}")
        for x, tt in ((0, 37), (1, 38)):
            a = ACC + 32*t + 16*x
            for r in range(8): A(f"  v_mul_f32 v{40+r}, s50, v{a+r}")
            for r in range(8): A(f"  v_exp_f32 v{40+r}, v{40+r}")
            for r in range(8): A(f"  v_mul_f32 v{a+8+r}, v{a+r}, v{a+8+r}")
            for r in range(8): A(f"  v_add_f32 v{40+r}, 1.0, v{40+r}")
            for r in range(8): A(f"  v_rcp_f32 v{40+r}, v{40+r}")
            A(f"  s_mul_i32 s54, s{tt}, 86\n  s_add_u32 s54, s54, s53\n  s_lshl_b32 s54, s54, 10\n  s_add_u32 s54, s54, {hex(WS_HF)}")
            for r in range(8): A(f"  v_mul_f32 v{40+r}, v{a+8+r}, v{40+r}")
            d = 48 + 4*x
            for r in range(4): A(f"  v_cvt_pk_bf16_f32 v{d+r}, v{40+2*r}, v{41+2*r}")
            A(f"  buffer_store_dwordx4 {vr(d,4)}, v2, s[44:47], s54 offen{SC}")
        A(f"{Ls}:")
    silu_tile(2, 0); silu_tile(3, 1)
    A(f"  s_branch {name}_epi_done\n{name}_epi_j1:")
    for t in range(4): silu_tile(t, 2 + t)
    A(f"{name}_epi_done:")
    A("  s_waitcnt vmcnt(0)")
    stamp(A, 3)
    A("  s_barrier")

Q = 32; O = 64; S = [192, 208]; P = 224; KB = [16, 20]; VB = [24, 232]; M = 240
APART = 65536; PART_W = 8*3*1024
ORDER = "e0 p7 e1 e2 e3 Bp L1 c0 e4 e5 c1 e6 e7 c2 e8 W S L2 e9 c3 e10 e11 c4 e12 e13 A c5 e14 e15 c6"
def attn_step(A, kb, jq):
    b = jq & 1; So, Sn = S[b], S[b ^ 1]
    pj = (jq - 1) % 8; pkb = kb if jq > 0 else kb ^ 1
    nj = (jq + 1) % 8; nkb = kb if jq < 7 else kb ^ 1
    for tok in ORDER.split():
        if tok[0] == 'e':
            i = int(tok[1:]); A(f"  v_exp_f32 v{So+i}, v{So+i}")
        elif tok[0] == 'c':
            i = int(tok[1:]); A(f"  v_cvt_pk_bf16_f32 v{P+i}, v{So+2*i}, v{So+2*i+1}")
        elif tok[0] == 'p':
            i = int(tok[1:]); A(f"  v_cvt_pk_bf16_f32 v{P+i}, v{Sn+2*i}, v{Sn+2*i+1}")
        elif tok == 'S':
            A(f"  {MFMA} {vr(Sn,16)}, {vr(KB[nkb],4)}, {vr(Q+4*nj,4)}, 0")
        elif tok == 'A':
            A(f"  {MFMA} {vr(O+16*jq,16)}, {vr(VB[kb],4)}, {vr(P,4)}, {vr(O+16*jq,16)}")
        elif tok == 'Bp':
            A(f"  {MFMA} {vr(O+16*pj,16)}, {vr(VB[pkb]+4,4)}, {vr(P+4,4)}, {vr(O+16*pj,16)}")
        elif tok == 'L1':
            if jq == 0:
                A(f"  buffer_load_dwordx4 {vr(KB[kb^1],4)}, v1, s[20:23], s30 offen{SC}")
        elif tok == 'L2':
            if jq == 0:
                A(f"  s_mov_b64 exec, s[36:37]")
                A(f"  buffer_load_dwordx4 {vr(VB[kb^1],4)}, v2, s[20:23], s31 offen{SC}")
                A(f"  buffer_load_dwordx4 {vr(VB[kb^1]+4,4)}, v2, s[20:23], s31 offen offset:512{SC}")
                A(f"  s_mov_b64 exec, -1")
                A(f"  s_add_u32 s30, s30, 1024")
                A(f"  s_add_u32 s31, s31, 1024")
                if kb == 0:
                    A(f"  s_cmp_eq_u32 s38, 7")
                    A(f"  s_cselect_b32 s30, s39, s30")
                    A(f"  s_cselect_b32 s31, s39, s31")
        elif tok == 'W':
            if jq == 7: A("  s_waitcnt vmcnt(0)")
        else: raise Exception(tok)
def gen_attn(A, name):
    srd(A, 20, 8, WS_TOTAL)
    A(f"""
  s_setprio {APRIO}
  s_lshr_b32 s28, s2, 3
  s_and_b32 s28, s28, 3
  s_lshl_b32 s29, s25, 2
  s_add_u32 s28, s28, s29                      ; head
  s_lshr_b32 s29, s2, 5                        ; qb
  v_and_b32 v4, 15, v0
  v_lshlrev_b32 v4, 4, v4
  s_lshr_b32 s30, s28, 1
  v_add_u32 v4, s30, v4
  v_lshlrev_b32 v4, 6, v4
  v_add_u32 v4, {hex(WS_F1)}, v4""")
    poll(A, name, 4, 5, "A")
    stamp(A, 4)
    A(f"""
  v_lshlrev_b32 v1, 4, v0                      ; lane*16
  v_and_b32 v2, 15, v0
  v_lshlrev_b32 v2, 4, v2
  v_lshrrev_b32 v3, 5, v0
  v_lshl_add_u32 v2, v3, 8, v2                 ; hh*256 + d*16
  s_mov_b32 s36, 0x0000ffff
  s_mov_b32 s37, 0x0000ffff
  s_mov_b32 s39, 0x40000000
  s_lshl_b32 s33, s28, 16                      ; head*64*1024
  s_lshl_b32 s34, s29, 13                      ; qb*8*1024
  s_add_u32 s34, s34, s33
  s_add_u32 s34, s34, {hex(WS_QF)}
  s_lshl_b32 s35, s24, 14
  s_add_u32 s35, s35, s33
  s_add_u32 s32, s35, {hex(WS_KF)}
  s_add_u32 s35, s35, {hex(WS_VF)}             ; V base
  v_mov_b32 v4, 0x3f803f80
  v_and_b32 v5, 16, v0
  v_cmp_ne_u32 vcc, 0, v5
  v_mov_b32 v5, 0
  s_nop 0
  v_cndmask_b32 v4, v5, v4, vcc""")
    for b in range(2):
        for r in range(8): A(f"  v_mov_b32 v{VB[b]+r}, v4")
    A(f"""
  buffer_load_dwordx4 {vr(KB[0],4)}, v1, s[20:23], s32 offen{SC}
  buffer_load_dwordx4 {vr(Q,4)}, v1, s[20:23], s34 offen{SC}
  s_mov_b64 exec, s[36:37]
  buffer_load_dwordx4 {vr(VB[0],4)}, v2, s[20:23], s35 offen{SC}
  buffer_load_dwordx4 {vr(VB[0]+4,4)}, v2, s[20:23], s35 offen offset:512{SC}
  s_mov_b64 exec, -1""")
    for j in range(1, 8):
        if j == 4: A("  s_add_u32 s34, s34, 4096")
        A(f"  buffer_load_dwordx4 {vr(Q+4*j,4)}, v1, s[20:23], s34 offen" + (f" offset:{(j%4)*1024}" if j % 4 else "") + SC)
    A(f"""
  s_add_u32 s30, s32, 1024
  s_add_u32 s31, s35, 1024""")
    for r in range(128): A(f"  v_mov_b32 v{O+r}, 0")
    for r in range(8): A(f"  v_mov_b32 v{P+r}, 0")
    for r in range(8): A(f"  v_mov_b32 v{M+r}, 0")
    A(f"  v_mov_b32 v{S[1]+14}, 0\n  v_mov_b32 v{S[1]+15}, 0")
    A(f"""
  s_waitcnt vmcnt(0)""")
    stamp(A, 5)
    A(f"""
  {MFMA} {vr(S[0],16)}, {vr(KB[0],4)}, {vr(Q,4)}, 0
  s_mov_b32 s38, 0
  s_nop 7
  s_nop 3
.p2align 6
{name}_aloop:""")
    for kb in range(2):
        for jq in range(8): attn_step(A, kb, jq)
    A(f"""
  s_add_u32 s38, s38, 1
  s_cmp_lt_u32 s38, 8
  s_cbranch_scc1 {name}_aloop
  v_cvt_pk_bf16_f32 v{P+7}, v{S[1]+14}, v{S[1]+15}
  s_nop 1
  {MFMA} {vr(O+16*7,16)}, {vr(VB[1]+4,4)}, {vr(P+4,4)}, {vr(O+16*7,16)}
  s_nop 7
  s_nop 7""")
    stamp(A, 6)
    A(f"  v_mov_b32 v4, 0\n  v_mov_b32 v5, 0")
    for j in range(8):
        for r in range(8):
            A(f"  v_fma_f32 v4, v{O+16*j+r}, v5, v4")
    A(f"""
  s_mov_b32 s40, 0x1f800000                    ; 2^-64
  s_mov_b32 s41, 0x5f800000                    ; 2^64
  v_cmp_eq_f32 vcc, v4, v4
  s_mov_b64 s[42:43], vcc""")
    for j in range(8):
        A(f"""  v_cmp_le_f32 vcc, s40, v{O+16*j+8}
  s_and_b64 s[42:43], s[42:43], vcc
  v_cmp_ge_f32 vcc, s41, v{O+16*j+8}
  s_and_b64 s[42:43], s[42:43], vcc""")
    A(f"""
  s_cmp_eq_u64 s[42:43], exec
  s_cbranch_scc1 {name}_adone""")
    for r in range(8): A(f"  v_mov_b32 v{M+r}, 0xff800000")
    A(f"""
  s_mov_b32 s38, 0
  s_mov_b32 s30, s32
{name}_fb1:
  buffer_load_dwordx4 {vr(KB[0],4)}, v1, s[20:23], s30 offen{SC}
  s_waitcnt vmcnt(0)""")
    for j in range(8):
        A(f"  {MFMA} {vr(S[0],16)}, {vr(KB[0],4)}, {vr(Q+4*j,4)}, 0")
        A("  s_nop 7\n  s_nop 7")
        for r in range(0, 16, 2):
            A(f"  v_max3_f32 v{M+j}, v{S[0]+r}, v{S[0]+r+1}, v{M+j}")
    A(f"""
  s_add_u32 s30, s30, 1024
  s_add_u32 s38, s38, 1
  s_cmp_lt_u32 s38, 16
  s_cbranch_scc1 {name}_fb1""")
    for j in range(8):
        A(f"  v_mov_b32 v4, v{M+j}\n  s_nop 1\n  v_permlane32_swap_b32 v4, v{M+j}\n  s_nop 1\n  v_max_f32 v{M+j}, v4, v{M+j}")
    for r in range(128): A(f"  v_mov_b32 v{O+r}, 0")
    A(f"""
  s_mov_b32 s38, 0
  s_mov_b32 s30, s32
  s_mov_b32 s31, s35
{name}_fb2:
  buffer_load_dwordx4 {vr(KB[0],4)}, v1, s[20:23], s30 offen{SC}
  s_mov_b64 exec, s[36:37]
  buffer_load_dwordx4 {vr(VB[0],4)}, v2, s[20:23], s31 offen{SC}
  buffer_load_dwordx4 {vr(VB[0]+4,4)}, v2, s[20:23], s31 offen offset:512{SC}
  s_mov_b64 exec, -1
  s_waitcnt vmcnt(0)""")
    for j in range(8):
        A(f"  {MFMA} {vr(S[0],16)}, {vr(KB[0],4)}, {vr(Q+4*j,4)}, 0")
        A("  s_nop 7\n  s_nop 7")
        for r in range(16): A(f"  v_sub_f32 v{S[0]+r}, v{S[0]+r}, v{M+j}")
        for r in range(16): A(f"  v_exp_f32 v{S[0]+r}, v{S[0]+r}")
        A("  s_nop 0")
        for r in range(8): A(f"  v_cvt_pk_bf16_f32 v{P+r}, v{S[0]+2*r}, v{S[0]+2*r+1}")
        A("  s_nop 1")
        A(f"  {MFMA} {vr(O+16*j,16)}, {vr(VB[0],4)}, {vr(P,4)}, {vr(O+16*j,16)}")
        A(f"  {MFMA} {vr(O+16*j,16)}, {vr(VB[0]+4,4)}, {vr(P+4,4)}, {vr(O+16*j,16)}")
    A(f"""
  s_add_u32 s30, s30, 1024
  s_add_u32 s31, s31, 1024
  s_add_u32 s38, s38, 1
  s_cmp_lt_u32 s38, 16
  s_cbranch_scc1 {name}_fb2
  s_nop 7
  s_nop 7
{name}_adone:
  s_mul_i32 s40, s24, {PART_W}
  s_add_u32 s40, s40, {APART}
  v_add_u32 v4, s40, v1
  v_lshlrev_b32 v5, 3, v0
  v_add_u32 v5, s40, v5""")
    for j in range(8):
        A(f"  v_mov_b32 v{O+16*j+9}, v{M+j}")
        A(f"  ds_write_b128 v4, {vr(O+16*j,4)} offset:{j*3072}")
        A(f"  ds_write_b128 v4, {vr(O+16*j+4,4)} offset:{j*3072+1024}")
        A(f"  ds_write_b64 v5, {vr(O+16*j+8,2)} offset:{j*3072+2048}")
    A(f"""
  s_waitcnt lgkmcnt(0)
  s_barrier
  s_mul_i32 s40, s24, {2*3072}
  s_add_u32 s40, s40, {APART}
  v_add_u32 v4, s40, v1
  v_lshlrev_b32 v5, 3, v0
  v_add_u32 v5, s40, v5
  v_add_u32 v6, {2*PART_W}, v4
  v_add_u32 v7, {2*PART_W}, v5
  s_lshl_b32 s41, s29, 3                       ; qb*8
  s_lshl_b32 s42, s24, 1
  s_add_u32 s41, s41, s42
  s_lshl_b32 s41, s41, 5
  s_add_u32 s41, s41, s28                      ; *32 + head
  s_lshl_b32 s41, s41, 10
  s_add_u32 s41, s41, {hex(WS_OF)}""")
    for t in range(2):
        R = 64 + 48*t
        for w in range(4):
            a4, a5 = ("v4", "v5") if w < 2 else ("v6", "v7")
            o = (w % 2)*PART_W + t*3072
            A(f"  ds_read_b128 {vr(R+12*w,4)}, {a4} offset:{o}")
            A(f"  ds_read_b128 {vr(R+12*w+4,4)}, {a4} offset:{o+1024}")
            A(f"  ds_read_b64 {vr(R+12*w+8,2)}, {a5} offset:{o+2048}")
    for t in range(2):
        R = 64 + 48*t
        A(f"  s_waitcnt lgkmcnt({12 if t == 0 else 0})")
        A(f"  v_max3_f32 v8, v{R+9}, v{R+12+9}, v{R+24+9}")
        A(f"  v_max_f32 v8, v8, v{R+36+9}")
        for w in range(4): A(f"  v_sub_f32 v{9+w}, v{R+12*w+9}, v8")
        for w in range(4): A(f"  v_exp_f32 v{9+w}, v{9+w}")
        A("  s_nop 0")
        A(f"  v_mul_f32 v13, v9, v{R+8}")
        for w in range(1, 4): A(f"  v_fmac_f32 v13, v{9+w}, v{R+12*w+8}")
        A("  v_rcp_f32 v13, v13")
        for r in range(8):
            A(f"  v_mul_f32 v{16+r}, v9, v{R+r}")
            for w in range(1, 4): A(f"  v_fmac_f32 v{16+r}, v{9+w}, v{R+12*w+r}")
        for r in range(8): A(f"  v_mul_f32 v{16+r}, v13, v{16+r}")
        for r in range(4): A(f"  v_cvt_pk_bf16_f32 v{24+4*t+r}, v{16+2*r}, v{17+2*r}")
        A(f"  buffer_store_dwordx4 {vr(24+4*t,4)}, v1, s[20:23], s41 offen{SC}")
        if t == 0: A(f"  s_add_u32 s41, s41, {32*1024}")
    A("  s_waitcnt vmcnt(0)\n  s_barrier")
    stamp_flush(A, 0, "s81", 8)
    A("  s_endpgm")

def gen_g(A, name):
    ACCB = 64; ACCA = 128; ACT = 192; WF = [16, 24]; D = 8
    vq = VmQ()
    srd(A, 20, 8, WS_TOTAL)
    srd(A, 12, 56, 1376*1024)
    A(f"""
  s_lshr_b32 s26, s25, 1
  s_lshl_b32 s26, s26, 3
  s_lshr_b32 s28, s2, 3
  s_and_b32 s28, s28, 7
  s_add_u32 s26, s26, s28                      ; tb
  s_and_b32 s28, s25, 1
  s_lshl_b32 s28, s28, 2
  s_lshr_b32 s30, s2, 6
  s_add_u32 s28, s28, s30                      ; nb
  s_mul_i32 s33, s24, 22
  s_cmp_eq_u32 s24, 3
  s_cselect_b32 s30, 1, 0
  s_sub_u32 s33, s33, s30
  s_cmp_ge_u32 s24, 2
  s_cselect_b32 s34, 21, 22                    ; n steps
  s_lshl_b32 s35, s33, 14
  s_lshl_b32 s36, s28, 7
  s_add_u32 s35, s35, s36                      ; W soffset
  s_mul_i32 s36, s26, 172                      ; 2*tb*86
  s_add_u32 s36, s36, s33
  s_lshl_b32 s36, s36, 10
  s_add_u32 s36, s36, {hex(WS_HF)}
  s_mov_b32 s37, {86*1024}
  s_lshl_b32 s38, s24, 14
  s_mov_b32 s42, 0x40000000
  v_lshrrev_b32 v2, 5, v0
  v_lshrrev_b32 v3, 1, v0
  v_and_b32 v3, 3, v3
  v_lshl_add_u32 v2, v2, 2, v3
  v_lshlrev_b32 v2, 10, v2
  v_lshrrev_b32 v3, 3, v0
  v_and_b32 v3, 3, v3
  v_lshl_add_u32 v2, v3, 5, v2
  v_and_b32 v3, 1, v0
  v_lshl_add_u32 v2, v3, 4, v2
  v_lshlrev_b32 v3, 4, v0                      ; v3 = lane*16
  v_lshrrev_b32 v4, 5, v0
  v_lshlrev_b32 v4, 9, v4                      ; hh*4*128
  v_lshrrev_b32 v5, 4, v0
  v_and_b32 v5, 1, v5
  v_lshl_add_u32 v4, v5, 7, v4
  v_and_b32 v5, 15, v0
  v_lshrrev_b32 v6, 2, v5
  v_lshl_add_u32 v4, v6, 5, v4
  v_and_b32 v6, 3, v5
  v_lshl_add_u32 v4, v6, 3, v4
  v_add_u32 v4, s38, v4
  s_waitcnt vmcnt(0)""")
    def issue_w(s, wso, masked):
        slot = s % D
        if masked:
            A(f"  s_cmp_gt_u32 s34, {s}\n  s_cselect_b32 s40, {wso}, s42"); w = "s40"
        else: w = wso
        A(f"  s_add_u32 m0, s38, {slot*2048}")
        A(f"  s_add_u32 s44, {w}, 8192")
        A(f"  buffer_load_dwordx4 v2, s[12:15], {w} offen lds")
        A(f"  s_add_u32 m0, s38, {slot*2048+1024}")
        A(f"  s_add_u32 {wso}, {wso}, 16384")
        A(f"  buffer_load_dwordx4 v2, s[12:15], s44 offen lds")
        vq.issue(("w", s)); vq.issue(("w", s))
    def issue_a(s, aso, masked):
        slot = s % D
        if masked:
            A(f"  s_cmp_gt_u32 s34, {s}\n  s_cselect_b32 s41, {aso}, s42"); a = "s41"
        else: a = aso
        A(f"  s_add_u32 s43, {a}, s37")
        A(f"  buffer_load_dwordx4 {vr(ACT+8*slot,4)}, v3, s[20:23], {a} offen{SC}")
        A(f"  buffer_load_dwordx4 {vr(ACT+8*slot+4,4)}, v3, s[20:23], s43 offen{SC}")
        A(f"  s_add_u32 {aso}, {aso}, 1024")
        vq.issue(("a", s)); vq.issue(("a", s))
    def trreads(s, buf):
        slot = s % D
        for t in range(2):
            A(f"  ds_read_b64_tr_b16 {vr(WF[buf]+4*t,2)}, v4 offset:{slot*2048 + t*256}")
            A(f"  ds_read_b64_tr_b16 {vr(WF[buf]+4*t+2,2)}, v4 offset:{slot*2048 + t*256 + 1024}")
    def run_steps(nstep, acc, wso, aso, masked, pre_w, pre_a):
        iw, ia = pre_w, pre_a
        vq.wait(A, {("w", 0)})
        trreads(0, 0)
        for s in range(nstep):
            slot = s % D; b = s & 1
            if s + 1 < nstep:
                vq.wait(A, {("w", s+1), ("a", s)})
                trreads(s + 1, b ^ 1)
                A("  s_waitcnt lgkmcnt(4)")
            else:
                vq.wait(A, {("a", s)})
                A("  s_waitcnt lgkmcnt(0)")
            for t in range(2):
                for u in range(2):
                    a = vr(acc+16*(2*t+u), 16)
                    A(f"  {MFMA} {a}, {vr(WF[b]+4*t,4)}, {vr(ACT+8*slot+4*u,4)}, {a}")
            if iw < nstep: issue_w(iw, wso, masked); iw += 1
            if ia < nstep: issue_a(ia, aso, masked); ia += 1
    for s in range(D): issue_w(s, "s35", True)
    for r in range(128): A(f"  v_mov_b32 v{ACCB+r}, 0")
    A(f"""
  s_barrier                                    ; E1
  s_cmp_lg_u32 s24, 0
  s_cbranch_scc1 {name}_g_nopost
  s_lshl_b32 s30, s29, 6
  s_add_u32 s30, s30, {hex(WS_F1)}
  v_mov_b32 v5, s30
  v_mov_b32 v6, s3
  s_mov_b64 exec, 1
  buffer_store_dword v6, v5, s[20:23], 0 offen sc1
  s_mov_b64 exec, -1
{name}_g_nopost:
  s_lshr_b32 s30, s26, 1
  s_lshl_b32 s30, s30, 4
  v_and_b32 v5, 15, v0
  v_add_u32 v5, s30, v5
  v_lshlrev_b32 v5, 6, v5
  v_add_u32 v5, {hex(WS_F1)}, v5""")
    poll(A, name, 5, 6, "H")
    vq.drain()
    stamp(A, 3)
    A(f"""
  v_and_b32 v5, 31, v0
  v_lshlrev_b32 v5, 2, v5
  s_lshl_b32 s39, s26, 8
  s_add_u32 s39, s39, {hex(WS_G)}
  buffer_load_dword v8, v5, s[20:23], s39 offen sc1
  buffer_load_dword v9, v5, s[20:23], s39 offen offset:128 sc1""")
    vq.issue("g"); vq.issue("g")
    for s in range(D): issue_a(s, "s36", True)
    A(f"  s_setprio {GPRIO}")
    vq.q = [("w", s) for s in range(D)] + vq.q
    run_steps(22, ACCB, "s35", "s36", True, D, D)
    stamp(A, 4)
    srd(A, 12, 58, 512*1024)
    A(f"""
  s_setprio 2
  s_lshl_b32 s35, s24, 17
  s_lshl_b32 s36, s28, 7
  s_add_u32 s35, s35, s36
  s_lshl_b32 s36, s26, 6                       ; (2tb)*32
  s_lshl_b32 s33, s24, 3
  s_add_u32 s36, s36, s33
  s_lshl_b32 s36, s36, 10
  s_add_u32 s36, s36, {hex(WS_OF)}
  s_mov_b32 s37, {32*1024}""")
    vq.drain()
    A("  s_waitcnt vmcnt(0)")
    for s in range(8): issue_w(s, "s35", False)
    A(f"""
  s_barrier                                    ; X
  s_barrier                                    ; Y
  s_cmp_lg_u32 s24, 0
  s_cbranch_scc1 {name}_g_nopost2
  s_lshr_b32 s30, s2, 3
  s_and_b32 s30, s30, 3
  s_lshl_b32 s31, s25, 2
  s_add_u32 s30, s30, s31                      ; head
  s_lshr_b32 s31, s2, 5                        ; qb
  s_lshl_b32 s31, s31, 5
  s_add_u32 s30, s30, s31
  s_lshl_b32 s30, s30, 6
  s_add_u32 s30, s30, {hex(WS_FO)}
  v_mov_b32 v5, s30
  v_mov_b32 v6, s3
  s_mov_b64 exec, 1
  buffer_store_dword v6, v5, s[20:23], 0 offen sc1
  s_mov_b64 exec, -1
{name}_g_nopost2:
  s_lshr_b32 s30, s26, 2
  s_lshl_b32 s30, s30, 5
  v_and_b32 v5, 31, v0
  v_add_u32 v5, s30, v5
  v_lshlrev_b32 v5, 6, v5
  v_add_u32 v5, {hex(WS_FO)}, v5""")
    stamp(A, 5)
    poll(A, name, 5, 6, "O")
    vq.drain()
    stamp(A, 6)
    for s in range(8): issue_a(s, "s36", False)
    vq.q = [("w", s) for s in range(8)] + vq.q
    run_steps(8, ACCA, "s35", "s36", False, 8, 8)
    A("  s_nop 7\n  s_nop 7")
    A("  v_sub_f32 v10, 1.0, v8\n  v_sub_f32 v11, 1.0, v9")
    for t in range(2):
        for u in range(2):
            for r in range(16):
                k = 16*(2*t+u)+r
                A(f"  v_mul_f32 v{ACCB+k}, v{10+u}, v{ACCB+k}")
                A(f"  v_fmac_f32 v{ACCB+k}, v{8+u}, v{ACCA+k}")
    A("  v_add_u32 v5, s38, v3")
    for tile in range(4):
        for q in range(4):
            A(f"  ds_write_b128 v5, {vr(ACCB+16*tile+4*q,4)} offset:{tile*4096+q*1024}")
    A(f"""
  s_waitcnt lgkmcnt(0)
  s_barrier
  s_lshl_b32 s40, s24, 12
  v_add_u32 v5, s40, v3""")
    for w in range(4):
        for q in range(4):
            A(f"  ds_read_b128 {vr(64+16*w+4*q,4)}, v5 offset:{w*16384+q*1024}")
    A("  s_waitcnt lgkmcnt(0)")
    for r in range(16):
        for w in range(1, 4): A(f"  v_add_f32 v{64+r}, v{64+r}, v{64+16*w+r}")
    for r in range(8): A(f"  v_cvt_pk_bf16_f32 v{16+r}, v{64+2*r}, v{65+2*r}")
    A(f"  s_load_dwordx2 s[60:61], s[0:1], {KA_OUT}\n  s_waitcnt lgkmcnt(0)")
    srd(A, 16, 60, 2048*1024)
    A(f"""
  s_and_b32 s41, s24, 1
  s_lshr_b32 s40, s24, 1
  s_lshl_b32 s42, s26, 6
  s_lshl_b32 s41, s41, 5
  s_add_u32 s42, s42, s41
  s_lshl_b32 s42, s42, 10
  s_lshl_b32 s43, s28, 7
  s_lshl_b32 s40, s40, 6
  s_add_u32 s43, s43, s40
  s_add_u32 s42, s42, s43
  v_and_b32 v5, 31, v0
  v_lshlrev_b32 v5, 10, v5
  v_lshrrev_b32 v6, 5, v0
  v_lshl_add_u32 v5, v6, 4, v5
  v_permlane32_swap_b32 v16, v18
  v_permlane32_swap_b32 v17, v19
  v_permlane32_swap_b32 v20, v22
  v_permlane32_swap_b32 v21, v23
  s_nop 1
  buffer_store_dwordx4 v[16:19], v5, s[16:19], s42 offen
  buffer_store_dwordx4 v[20:23], v5, s[16:19], s42 offen offset:32
  s_or_b32 s30, s2, s24
  s_cmp_lg_u32 s30, 0
  s_cbranch_scc1 {name}_g_noepoch
  v_mov_b32 v5, {WS_EPOCH}
  v_mov_b32 v6, s3
  s_mov_b64 exec, 1
  buffer_store_dword v6, v5, s[20:23], 0 offen
  s_mov_b64 exec, -1
{name}_g_noepoch:""")
    stamp_flush(A, 0, "s81", 8)
    A("  s_endpgm")

def gen_z(A, name=NAME):
    kernel_begin(A, name)
    stamp_init(A)
    A(f"""
  s_cmp_ge_u32 s2, 256
  s_cbranch_scc1 {name}_end
  s_load_dwordx4 s[4:7], s[0:1], {KA_AX}       ; A_x, wqkv
  s_load_dwordx4 s[52:55], s[0:1], {KA_WG}
  s_load_dwordx2 s[8:9], s[0:1], {KA_WS}
  s_load_dwordx2 s[10:11], s[0:1], {KA_GW}
  s_load_dwordx2 s[56:57], s[0:1], {KA_WD}
  s_load_dwordx2 s[58:59], s[0:1], {KA_WO}
  v_lshrrev_b32 v1, 6, v0
  v_and_b32 v0, 63, v0
  s_and_b32 s25, s2, 7
  s_lshr_b32 s27, s2, 3
  v_readfirstlane_b32 s24, v1
  s_and_b32 s26, s25, 3
  s_lshl_b32 s26, s26, 2
  s_and_b32 s27, s27, 3
  s_add_u32 s26, s26, s27                      ; rb = (j&3)*4 + ((c>>3)&3)
  s_lshr_b32 s27, s25, 2
  s_lshl_b32 s27, s27, 3
  s_lshr_b32 s28, s2, 5
  s_add_u32 s27, s27, s28                      ; cg = (j>>2)*8 + (c>>5)
  s_lshl_b32 s29, s26, 4
  s_add_u32 s29, s29, s27
  s_waitcnt lgkmcnt(0)
  s_load_dword s3, s[8:9], {WS_EPOCH}""")
    if asmlib.STAMPS: A("  s_mov_b32 s81, s24")
    A(f"""
  s_cmp_lt_u32 s24, 4
  s_cbranch_scc1 {name}_compute""")
    srd(A, 20, 8, WS_TOTAL)
    gen_loader(A, name)
    A("  s_mul_i32 s3, s3, 1664525\n  s_add_u32 s3, s3, 1013904223")
    gen_g(A, name)
    A(f"{name}_compute:")
    gen_p12_compute(A, name)
    A("  s_mul_i32 s3, s3, 1664525\n  s_add_u32 s3, s3, 1013904223")
    gen_attn(A, name)
    A(f"{name}_end:\n  s_endpgm")
    return kernel_desc(name, 256, 96)
```

```python
import sys
from common import *
import asmlib
if "--stamps" in sys.argv: asmlib.STAMPS = True; sys.argv.remove("--stamps")
if "--cycles" in sys.argv: asmlib.CLK = "s_memtime"; sys.argv.remove("--cycles")
import zk
A = Asm()
d = zk.gen_z(A)
hdr = """; gated_mix__mha_block__swiglu_ffn__prompt : single fused gfx950 kernel (written with my own python generator scripts)
; @launch grid=(256,1,1) block=(512,1,1) lds=%d
.amdgcn_target "amdgcn-amd-amdhsa--gfx950"
""" % zk.LDS_Z
out = sys.argv[1]
open(out, "w").write(hdr + A.text() + d)
print("wrote", out)
```

```python
from common import *
import asmlib, os
from asmlib import stamp, stamp_init, stamp_flush
NST = 3
XB = 16384; WB = 12288
STG = XB + 3*WB
LDS_Z = 163840
HL = 65536
LAG = int(os.environ.get("LAG", "8"))
SC = " sc1"
APRIO = int(os.environ.get('APRIO', '1')); GPRIO = int(os.environ.get('GPRIO', '0'))
SPIN_MAX = 1 << 22
NAME = "gated_mix__mha_block__swiglu_ffn__prompt_kernel"

def poll(A, name, vaddr, vtmp, uid):
    A(f"""
  s_mov_b32 s62, 0
{name}_poll{uid}:
  buffer_load_dword v{vtmp}, v{vaddr}, s[20:23], 0 offen sc1
  s_waitcnt vmcnt(0)
  v_cmp_eq_u32 vcc, s3, v{vtmp}
  s_cmp_eq_u64 vcc, exec
  s_cbranch_scc1 {name}_poll{uid}_ok
  s_add_u32 s62, s62, 1
  s_cmp_lt_u32 s62, {SPIN_MAX}
  s_cbranch_scc0 {name}_poll{uid}_ok
  s_sleep 2
  s_branch {name}_poll{uid}
{name}_poll{uid}_ok:""")

def gen_loader(A, name):
    DX = 8; DQ = [9, 10, 11]; DG = [12, 13, 14]; DU = [15, 16, 17]
    A(f"""
  s_sub_u32 s24, s24, 4                        ; lw
  v_lshrrev_b32 v3, 3, v0                      ; l>>3
  v_lshrrev_b32 v4, 4, v0                      ; l>>4
  s_and_b32 s32, s24, 1
  s_lshl_b32 s32, s32, 2
  v_add_u32 v4, s32, v4                        ; f
  v_and_b32 v5, 7, v0
  v_xor_b32 v5, v5, v4                         ; c
  v_lshlrev_b32 v5, 4, v5
  v_lshl_add_u32 v{DX}, v3, 10, v5             ; voff_x
  s_lshl_b32 s34, s26, 17
  s_lshl_b32 s35, s24, 13
  s_add_u32 s34, s34, s35
  s_lshl_b32 s36, s24, 10
  s_waitcnt lgkmcnt(0)""")
    srd(A, 12, 4, 2048*1024)
    def dma_x(kc, n):
        st = (kc % NST) * STG
        A(f"  s_add_u32 m0, s36, {st + n*4096}")
        A(f"  s_add_u32 s38, s34, {n*32768 + kc*128}")
        A(f"  buffer_load_dwordx4 v{DX}, s[12:15], s38 offen lds")
    for n in range(4): dma_x(0, n)
    srd(A, 16, 6, 512*3072)
    srd(A, 40, 52, 512*2752)
    srd(A, 44, 54, 512*2752)
    A(f"""
  v_lshrrev_b32 v4, 1, v0
  v_and_b32 v4, 3, v4                          ; r
  v_and_b32 v5, 1, v0
  v_lshlrev_b32 v5, 4, v5                      ; half*16
  s_lshl_b32 s33, s27, 6
  s_mul_i32 s39, s27, 192""")
    for p in range(3):
        A(f"""
  v_add_u32 v6, {8*p}, v3                      ; b
  v_mul_u32_u24 v7, 43, v6
  v_lshrrev_b32 v7, 8, v7                      ; kgl = b/6
  v_mul_u32_u24 v18, 6, v7
  v_sub_u32 v6, v6, v18                        ; s = b%6
  v_lshl_add_u32 v7, v7, 2, v4
  v_mul_u32_u24 v18, 3072, v7
  v_lshrrev_b32 v19, 1, v6
  v_lshl_add_u32 v18, v19, 10, v18             ; + (s>>1)*1024
  v_and_b32 v19, 1, v6
  v_lshl_add_u32 v18, v19, 5, v18              ; + (s&1)*32
  v_add3_u32 v{DQ[p]}, v18, v5, s33
  v_mul_u32_u24 v18, 2752, v7
  v_add3_u32 v18, v18, v5, s39
  v_lshl_add_u32 v{DG[p]}, v6, 5, v18
  v_xor_b32 v6, 1, v6
  v_lshl_add_u32 v{DU[p]}, v6, 5, v18""")
    A(f"""
  s_mul_i32 s35, s24, {16*3072}
  s_mul_i32 s48, s24, {16*2752}
  s_mul_i32 s37, s24, 3072
  s_add_u32 s37, s37, {XB}""")
    def dma_list(kc):
        st = (kc % NST) * STG
        L = [ (lambda n=n: dma_x(kc, n)) for n in range(4) ]
        for reg, (srdr, pats, sb, rs) in enumerate(((16, DQ, 35, 3072), (40, DG, 48, 2752), (44, DU, 48, 2752))):
            for p in range(3):
                def f(reg=reg, srdr=srdr, pats=pats, sb=sb, rs=rs, p=p):
                    A(f"  s_add_u32 m0, s37, {st + reg*WB + p*1024}")
                    A(f"  s_add_u32 s39, s{sb}, {kc*64*rs}")
                    A(f"  buffer_load_dwordx4 v{pats[p]}, s[{srdr}:{srdr+3}], s39 offen lds")
                L.append(f)
        return L
    stream = []
    for kc in range(8): stream += dma_list(kc)
    pos = [4]
    def issue_upto(n):
        while pos[0] < n:
            stream[pos[0]](); pos[0] += 1
    issue_upto(13)
    A(f"""
  s_lshl_b32 s30, s26, 7
  s_lshl_b32 s31, s27, 3
  s_add_u32 s30, s30, s31
  s_lshl_b32 s31, s24, 1
  s_add_u32 s30, s30, s31                      ; token0
  s_lshl_b32 s31, s30, 10
  v_lshlrev_b32 v2, 4, v0
  buffer_load_dwordx4 v[20:23], v2, s[12:15], s31 offen
  buffer_load_dwordx4 v[24:27], v2, s[12:15], s31 offen offset:1024
  global_load_dwordx4 v[28:31], v2, s[10:11]""")
    stamp(A, 1)
    for i in range(8):
        issue_upto(min(13*(i+1) + LAG, 104))
        younger = pos[0] - 13*(i+1) + (3 if i == 0 else 0)
        if os.environ.get("CHST") and i in (1, 3, 5, 7): stamp(A, 3 + i//2)
        A(f"  s_waitcnt vmcnt({younger})")
        A("  s_barrier")
        if i == 1:
            A("""
  v_lshlrev_b32 v32, 16, v28
  v_and_b32 v33, 0xffff0000, v28
  v_lshlrev_b32 v34, 16, v29
  v_and_b32 v35, 0xffff0000, v29
  v_lshlrev_b32 v36, 16, v30
  v_and_b32 v37, 0xffff0000, v30
  v_lshlrev_b32 v38, 16, v31
  v_and_b32 v39, 0xffff0000, v31""")
            for t, base, acc in ((0, 20, 40), (1, 24, 41)):
                for j in range(4):
                    A(f"  v_lshlrev_b32 v42, 16, v{base+j}")
                    A(f"  v_and_b32 v43, 0xffff0000, v{base+j}")
                    if j == 0: A(f"  v_mul_f32 v{acc}, v42, v32")
                    else: A(f"  v_fmac_f32 v{acc}, v42, v{32+2*j}")
                    A(f"  v_fmac_f32 v{acc}, v43, v{33+2*j}")
            for ctl in ("row_shr:1", "row_shr:2", "row_shr:4", "row_shr:8"):
                A("  s_nop 1")
                A(f"  v_add_f32_dpp v40, v40, v40 {ctl} row_mask:0xf bank_mask:0xf bound_ctrl:0")
                A(f"  v_add_f32_dpp v41, v41, v41 {ctl} row_mask:0xf bank_mask:0xf bound_ctrl:0")
            A(f"""  s_nop 1
  v_readlane_b32 s60, v40, 15
  v_readlane_b32 s61, v40, 31
  v_readlane_b32 s62, v40, 47
  v_readlane_b32 s63, v40, 63
  v_readlane_b32 s46, v41, 15
  v_readlane_b32 s47, v41, 31
  v_readlane_b32 s49, v41, 47
  v_readlane_b32 s50, v41, 63
  s_nop 1
  v_mov_b32 v44, s60
  v_add_f32 v44, s61, v44
  v_add_f32 v44, s62, v44
  v_add_f32 v44, s63, v44
  v_mov_b32 v45, s46
  v_add_f32 v45, s47, v45
  v_add_f32 v45, s49, v45
  v_add_f32 v45, s50, v45
  v_cmp_eq_u32 vcc, 1, v0
  s_nop 1
  v_cndmask_b32 v44, v44, v45, vcc             ; lane1 -> token1, others token0
  v_mul_f32 v44, 0xbfb8aa3b, v44               ; -log2e * z
  v_exp_f32 v44, v44
  s_nop 0
  v_add_f32 v44, 1.0, v44
  v_rcp_f32 v44, v44
  s_lshl_b32 s60, s30, 2
  v_lshlrev_b32 v45, 2, v0
  v_add_u32 v45, s60, v45
  v_add_u32 v45, {hex(WS_G)}, v45""".replace("s46", "s51").replace("s47", "s31"))
    A(f"""
  v_cmp_gt_u32 vcc, 2, v0
  s_and_saveexec_b64 s[48:49], vcc
  buffer_store_dword v44, v45, s[20:23], 0 offen{SC}
  s_mov_b64 exec, s[48:49]""")
    stamp(A, 2)
    A("  s_barrier")

def gen_touch(A):
    srd(A, 12, 4, 2048*1024)
    srd(A, 16, 6, 512*3072)
    srd(A, 40, 52, 512*2752)
    srd(A, 44, 54, 512*2752)
    A(f"""
  s_and_b32 s30, s27, 7
  s_lshl_b32 s30, s30, 4
  s_lshl_b32 s31, s26, 7
  s_add_u32 s30, s30, s31
  s_lshl_b32 s31, s24, 2
  s_add_u32 s30, s30, s31
  s_lshl_b32 s30, s30, 10
  v_and_b32 v48, 31, v0
  v_lshlrev_b32 v48, 7, v48
  buffer_load_dword v240, v48, s[12:15], s30 offen
  s_and_b32 s30, s26, 3
  s_lshl_b32 s30, s30, 7
  s_lshl_b32 s31, s24, 5
  s_add_u32 s30, s30, s31
  v_and_b32 v48, 31, v0
  v_lshrrev_b32 v49, 5, v0
  v_mul_u32_u24 v50, 3072, v48
  v_lshl_add_u32 v50, v49, 10, v50
  s_mul_i32 s31, s30, 3072
  s_lshl_b32 s32, s27, 6
  s_add_u32 s31, s31, s32
  buffer_load_dword v241, v50, s[16:19], s31 offen
  v_mul_u32_u24 v51, 3072, v48
  s_add_u32 s31, s31, 2048
  s_mov_b32 exec_hi, 0
  buffer_load_dword v242, v51, s[16:19], s31 offen
  s_mov_b32 exec_hi, -1
  v_mul_u32_u24 v50, 2752, v48
  v_lshl_add_u32 v50, v49, 7, v50
  s_mul_i32 s31, s30, 2752
  s_mul_i32 s32, s27, 192
  s_add_u32 s31, s31, s32
  buffer_load_dword v243, v50, s[40:43], s31 offen
  buffer_load_dword v244, v50, s[44:47], s31 offen""")
ACC = 64; VACC = 192
def gen_p12_compute(A, name):
    XA = [2, 3, 4, 5]; XBr = [6, 7, 8, 9]; WA = [10, 11, 12, 13, 14]
    F = [[208, 212, 216, 220, 224, 228, 232], [16, 20, 24, 28, 32, 36, 40]]
    A("  s_waitcnt lgkmcnt(0)")
    TOUCH = int(os.environ.get("TOUCH", "0"))
    if TOUCH == 1:
        gen_touch(A)
    A(f"""
  s_lshr_b32 s30, s24, 1                       ; i
  s_and_b32 s31, s24, 1                        ; j
  v_and_b32 v48, 31, v0                        ; token
  v_lshrrev_b32 v49, 5, v0                     ; hh
  v_lshrrev_b32 v50, 1, v48
  v_and_b32 v50, 7, v50                        ; f
  s_lshl_b32 s32, s30, 1
  s_add_u32 s32, s32, s31                      ; tile a = 2i+j
  s_xor_b32 s33, s32, 1                        ; tile b
  s_lshl_b32 s34, s32, 12
  s_lshl_b32 s35, s33, 12
  v_lshlrev_b32 v51, 7, v48""")
    for s in range(4):
        A(f"  v_add_u32 v52, {2*s}, v49")
        A(f"  v_xor_b32 v52, v52, v50")
        A(f"  v_lshl_add_u32 v52, v52, 4, v51")
        A(f"  v_add_u32 v{XA[s]}, s34, v52")
        A(f"  v_add_u32 v{XBr[s]}, s35, v52")
    A(f"""
  v_and_b32 v48, 15, v0                        ; i16
  v_lshrrev_b32 v50, 4, v0
  v_and_b32 v50, 1, v50                        ; u / gu
  v_mul_u32_u24 v51, 1536, v49
  v_lshrrev_b32 v52, 2, v48
  v_lshl_add_u32 v51, v52, 5, v51
  v_and_b32 v52, 3, v48
  v_lshl_add_u32 v51, v52, 3, v51              ; common
  v_lshl_add_u32 v53, v50, 7, v51
  v_add_u32 v53, {XB}, v53
  v_add_u32 v{WA[4]}, 512, v53
  v_mul_u32_u24 v54, {WB}, v50
  v_add_u32 v54, v54, v51
  v_add_u32 v54, {XB+WB}, v54
  s_cmp_eq_u32 s31, 0
  s_cbranch_scc0 {name}_wj1
  v_mov_b32 v{WA[0]}, v53                      ; Q
  v_add_u32 v{WA[1]}, 256, v53                 ; K
  v_xor_b32 v55, 0, v50
  v_lshl_add_u32 v{WA[2]}, v55, 7, v54         ; F0
  v_xor_b32 v55, 1, v50
  v_lshl_add_u32 v{WA[3]}, v55, 7, v54         ; F1
  s_branch {name}_wdone
{name}_wj1:""")
    for t in range(4):
        A(f"  v_xor_b32 v55, {2+t}, v50\n  v_lshl_add_u32 v{WA[t]}, v55, 7, v54")
    A(f"{name}_wdone:")
    for r in range(144): A(f"  v_mov_b32 v{64+r}, 0")
    def rd_list(buf, s):
        L = [f"  ds_read_b128 {vr(F[buf][0],4)}, v{XA[s]}", f"  ds_read_b128 {vr(F[buf][1],4)}, v{XBr[s]}"]
        for t in range(5):
            L.append(f"  ds_read_b64_tr_b16 {vr(F[buf][2+t],2)}, v{WA[t]} offset:{s*3072}")
            L.append(f"  ds_read_b64_tr_b16 {vr(F[buf][2+t]+2,2)}, v{WA[t]} offset:{s*3072 + 768}")
        return L
    def mf_list(buf):
        L = []
        for t in range(4):
            for x in range(2):
                a = vr(ACC + 32*t + 16*x, 16)
                L.append(f"  {MFMA} {a}, {vr(F[buf][2+t],4)}, {vr(F[buf][x],4)}, {a}")
        L.append(f"  {MFMA} {vr(VACC,16)}, {vr(F[buf][0],4)}, {vr(F[buf][6],4)}, {vr(VACC,16)}")
        return L
    def interleave(mf, rd):
        k = 0
        for i, m in enumerate(mf):
            A(m)
            n = 2 if i < 6 else 0
            for _ in range(n):
                if k < len(rd): A(rd[k]); k += 1
        while k < len(rd): A(rd[k]); k += 1
    def advance(kc):
        d = STG if ((kc+1) % NST) != 0 else -(NST-1)*STG
        for r in XA + XBr + WA:
            if d > 0: A(f"  v_add_u32 v{r}, {d}, v{r}")
            else: A(f"  v_subrev_u32 v{r}, {-d}, v{r}")
    stamp(A, 1)
    A("  s_barrier")
    if TOUCH == 2:
        A("  s_mov_b32 s56, s30\n  s_mov_b32 s57, s31\n  s_mov_b32 s58, s32\n  s_mov_b32 s59, s33")
        gen_touch(A)
        A("  s_mov_b32 s30, s56\n  s_mov_b32 s31, s57\n  s_mov_b32 s32, s58\n  s_mov_b32 s33, s59")
    for l in rd_list(0, 0): A(l)
    for kc in range(8):
        for s in range(4):
            b = s & 1
            A("  s_waitcnt lgkmcnt(0)")
            if s < 3:
                interleave(mf_list(b), rd_list(b ^ 1, s + 1))
            else:
                if kc < 7:
                    advance(kc)
                    if os.environ.get("CHST") and kc in (0, 2, 4, 6): stamp(A, 3 + kc//2)
                    A("  s_barrier")
                    interleave(mf_list(b), rd_list(0, 0))
                else:
                    A("  s_barrier")
                    interleave(mf_list(b), [])
    stamp(A, 2)
    srd(A, 44, 8, WS_TOTAL)
    A(f"""
  s_nop 7
  v_lshlrev_b32 v2, 4, v0                      ; lane*16
  s_lshl_b32 s36, s26, 2
  s_add_u32 s37, s36, s32
  s_add_u32 s38, s36, s33
  v_and_b32 v3, 15, v0
  v_lshlrev_b32 v3, 4, v3
  v_lshrrev_b32 v4, 5, v0
  v_lshl_add_u32 v3, v4, 8, v3
  v_lshrrev_b32 v4, 4, v0
  v_and_b32 v4, 1, v4
  v_lshl_add_u32 v3, v4, 16, v3
  s_lshl_b32 s39, s27, 7                       ; (2cg)*64
  s_add_u32 s40, s39, s37
  s_lshl_b32 s40, s40, 10
  s_add_u32 s41, s39, s38
  s_lshl_b32 s41, s41, 10
  s_add_u32 s42, s40, {hex(WS_VF)}""")
    for r in range(8): A(f"  v_cvt_pk_bf16_f32 v{16+r}, v{VACC+2*r}, v{VACC+2*r+1}")
    A(f"""
  buffer_store_dwordx4 v[16:19], v3, s[44:47], s42 offen{SC}
  buffer_store_dwordx4 v[20:23], v3, s[44:47], s42 offen offset:512{SC}
  s_mov_b32 s50, 0xbfb8aa3b
  s_cmp_eq_u32 s31, 0
  s_cbranch_scc0 {name}_epi_j1""")
    A(f"  s_mov_b32 s55, {hex(f2u(QSCALE))}")
    for x, so in ((0, 40), (1, 41)):
        a = ACC + 16*x
        for r in range(16): A(f"  v_mul_f32 v{a+r}, s55, v{a+r}")
        for r in range(8): A(f"  v_cvt_pk_bf16_f32 v{24+r}, v{a+2*r}, v{a+2*r+1}")
        A(f"  s_add_u32 s34, s{so}, {hex(WS_QF)}\n  s_add_u32 s35, s34, 65536")
        A(f"  buffer_store_dwordx4 v[24:27], v2, s[44:47], s34 offen{SC}\n  buffer_store_dwordx4 v[28:31], v2, s[44:47], s35 offen{SC}")
        a = ACC + 32 + 16*x
        for r in range(8): A(f"  v_cvt_pk_bf16_f32 v{32+r}, v{a+2*r}, v{a+2*r+1}")
        A(f"  s_add_u32 s34, s{so}, {hex(WS_KF)}\n  s_add_u32 s35, s34, 65536")
        A(f"  buffer_store_dwordx4 v[32:35], v2, s[44:47], s34 offen{SC}\n  buffer_store_dwordx4 v[36:39], v2, s[44:47], s35 offen{SC}")
    def silu_tile(t, slab_off):
        for x, tl in ((0, 32), (1, 33)):
            a = ACC + 32*t + 16*x
            for r in range(8): A(f"  v_mul_f32 v{40+r}, s50, v{a+r}")
            for r in range(8): A(f"  v_exp_f32 v{40+r}, v{40+r}")
            for r in range(8): A(f"  v_mul_f32 v{a+8+r}, v{a+r}, v{a+8+r}")
            for r in range(8): A(f"  v_add_f32 v{40+r}, 1.0, v{40+r}")
            for r in range(8): A(f"  v_rcp_f32 v{40+r}, v{40+r}")
            A(f"  s_mul_i32 s54, s{tl}, 6144\n  s_add_u32 s54, s54, {HL + slab_off*1024}")
            for r in range(8): A(f"  v_mul_f32 v{40+r}, v{a+8+r}, v{40+r}")
            d = 48 + 4*x
            A(f"  v_add_u32 v56, s54, v2")
            for r in range(4): A(f"  v_cvt_pk_bf16_f32 v{d+r}, v{40+2*r}, v{41+2*r}")
            A(f"  ds_write_b128 v56, {vr(d,4)}")
    silu_tile(2, 0); silu_tile(3, 1)
    A(f"  s_branch {name}_epi_done\n{name}_epi_j1:")
    for t in range(4): silu_tile(t, 2 + t)
    A(f"{name}_epi_done:")
    A("  s_waitcnt vmcnt(0) lgkmcnt(0)")
    if not os.environ.get("CHST"): stamp(A, 3)
    A("  s_barrier")

Q = 32; O = 64; S = [192, 208]; P = 224; KB = [16, 20]; VB = [24, 232]; M = 240
APART = 65536; TILE_P = 2560; PART_W = 8*TILE_P
ORDER = "e0 p7 e1 e2 e3 Bp L1 c0 e4 e5 c1 e6 e7 c2 e8 W S L2 e9 c3 e10 e11 c4 e12 e13 A c5 e14 e15 c6"
def attn_step(A, kb, jq):
    b = jq & 1; So, Sn = S[b], S[b ^ 1]
    pj = (jq - 1) % 8; pkb = kb if jq > 0 else kb ^ 1
    nj = (jq + 1) % 8; nkb = kb if jq < 7 else kb ^ 1
    for tok in ORDER.split():
        if tok[0] == 'e':
            i = int(tok[1:]); A(f"  v_exp_f32 v{So+i}, v{So+i}")
        elif tok[0] == 'c':
            i = int(tok[1:]); A(f"  v_cvt_pk_bf16_f32 v{P+i}, v{So+2*i}, v{So+2*i+1}")
        elif tok[0] == 'p':
            i = int(tok[1:]); A(f"  v_cvt_pk_bf16_f32 v{P+i}, v{Sn+2*i}, v{Sn+2*i+1}")
        elif tok == 'S':
            A(f"  {MFMA} {vr(Sn,16)}, {vr(KB[nkb],4)}, {vr(Q+4*nj,4)}, 0")
        elif tok == 'A':
            A(f"  {MFMA} {vr(O+16*jq,16)}, {vr(VB[kb],4)}, {vr(P,4)}, {vr(O+16*jq,16)}")
        elif tok == 'Bp':
            A(f"  {MFMA} {vr(O+16*pj,16)}, {vr(VB[pkb]+4,4)}, {vr(P+4,4)}, {vr(O+16*pj,16)}")
        elif tok == 'L1':
            if jq == 0:
                A(f"  buffer_load_dwordx4 {vr(KB[kb^1],4)}, v1, s[20:23], s30 offen{SC}")
            elif jq == 1:
                A(f"  s_add_u32 s30, s30, 1024")
            elif jq == 2 and kb == 0:
                A(f"  s_cmp_eq_u32 s38, 7")
                A(f"  s_cselect_b32 s30, s39, s30")
        elif tok == 'L2':
            if jq == 0:
                A(f"  s_mov_b64 exec, s[36:37]")
                A(f"  buffer_load_dwordx4 {vr(VB[kb^1],4)}, v2, s[20:23], s31 offen{SC}")
                A(f"  buffer_load_dwordx4 {vr(VB[kb^1]+4,4)}, v2, s[20:23], s31 offen offset:512{SC}")
                A(f"  s_mov_b64 exec, -1")
            elif jq == 1:
                A(f"  s_add_u32 s31, s31, 1024")
            elif jq == 2 and kb == 0:
                A(f"  s_cmp_eq_u32 s38, 7")
                A(f"  s_cselect_b32 s31, s39, s31")
        elif tok == 'W':
            if jq == 7: A("  s_waitcnt vmcnt(0)")
        else: raise Exception(tok)
def merge_tile(A, R, T, tile_s, unit_imm=None):
    A(f"""
  s_mul_i32 s40, {tile_s}, {TILE_P}
  s_add_u32 s40, s40, {APART}
  v_add_u32 v{T}, s40, v1
  v_lshrrev_b32 v{T+1}, 1, v1
  v_add_u32 v{T+1}, s40, v{T+1}
  v_add_u32 v{T+2}, {2*PART_W}, v{T}
  v_add_u32 v{T+3}, {2*PART_W}, v{T+1}""")
    for w in range(4):
        a4, a5 = (T, T+1) if w < 2 else (T+2, T+3)
        o = (w % 2)*PART_W
        A(f"  ds_read_b64 {vr(R+10*w+8,2)}, v{a5} offset:{o+2048}")
    for w in range(4):
        a4, a5 = (T, T+1) if w < 2 else (T+2, T+3)
        o = (w % 2)*PART_W
        A(f"  ds_read_b128 {vr(R+10*w,4)}, v{a4} offset:{o}")
        A(f"  ds_read_b128 {vr(R+10*w+4,4)}, v{a4} offset:{o+1024}")
    A(f"""
  s_lshl_b32 s41, s29, 3
  s_add_u32 s41, s41, {tile_s}
  s_lshl_b32 s41, s41, 5
  s_add_u32 s41, s41, s28                      ; *32 + head
  s_lshl_b32 s41, s41, 10
  s_add_u32 s41, s41, {hex(WS_OF)}
  s_waitcnt lgkmcnt(8)""")
    A(f"  v_max3_f32 v{T}, v{R+9}, v{R+19}, v{R+29}")
    A(f"  v_max_f32 v{T}, v{T}, v{R+39}")
    for w in range(4): A(f"  v_sub_f32 v{T+1+w}, v{R+10*w+9}, v{T}")
    for w in range(4): A(f"  v_exp_f32 v{T+1+w}, v{T+1+w}")
    A("  s_nop 0")
    A(f"  v_mul_f32 v{T+5}, v{T+1}, v{R+8}")
    for w in range(1, 4): A(f"  v_fmac_f32 v{T+5}, v{T+1+w}, v{R+10*w+8}")
    A(f"  v_rcp_f32 v{T+5}, v{T+5}")
    A("  s_nop 0")
    for w in range(4): A(f"  v_mul_f32 v{T+1+w}, v{T+5}, v{T+1+w}")
    A("  s_waitcnt lgkmcnt(0)")
    for r in range(8):
        A(f"  v_mul_f32 v{T+6+r}, v{T+1}, v{R+r}")
        for w in range(1, 4): A(f"  v_fmac_f32 v{T+6+r}, v{T+1+w}, v{R+10*w+r}")
    for r in range(4): A(f"  v_cvt_pk_bf16_f32 v{R+r}, v{T+6+2*r}, v{T+7+2*r}")
    A(f"  buffer_store_dwordx4 {vr(R,4)}, v1, s[20:23], s41 offen{SC}")
def gen_attn(A, name):
    srd(A, 20, 8, WS_TOTAL)
    A(f"""
  s_setprio {APRIO}
  s_lshr_b32 s28, s2, 3
  s_and_b32 s28, s28, 3
  s_lshl_b32 s29, s25, 2
  s_add_u32 s28, s28, s29                      ; head
  s_lshr_b32 s29, s2, 5                        ; qb
  v_lshlrev_b32 v1, 4, v0                      ; lane*16
  v_and_b32 v2, 15, v0
  v_lshlrev_b32 v2, 4, v2
  v_lshrrev_b32 v3, 5, v0
  v_lshl_add_u32 v2, v3, 8, v2                 ; hh*256 + d*16
  s_mov_b32 s36, 0x0000ffff
  s_mov_b32 s37, 0x0000ffff
  s_mov_b32 s39, 0x40000000
  s_lshl_b32 s33, s28, 16                      ; head*64*1024
  s_lshl_b32 s34, s29, 13                      ; qb*8*1024
  s_add_u32 s34, s34, s33
  s_add_u32 s34, s34, {hex(WS_QF)}
  s_lshl_b32 s35, s24, 14
  s_add_u32 s35, s35, s33
  s_add_u32 s32, s35, {hex(WS_KF)}
  s_add_u32 s35, s35, {hex(WS_VF)}             ; V base
  v_mov_b32 v4, 0x3f803f80
  v_and_b32 v5, 27, v0
  v_cmp_eq_u32 vcc, 16, v5
  v_mov_b32 v5, 0
  s_nop 0
  v_cndmask_b32 v4, v5, v4, vcc""")
    for b in range(2):
        for r in range(8): A(f"  v_mov_b32 v{VB[b]+r}, v4")
    for r in range(128): A(f"  v_mov_b32 v{O+r}, 0")
    for r in range(8): A(f"  v_mov_b32 v{P+r}, 0")
    for r in range(8): A(f"  v_mov_b32 v{M+r}, 0")
    A(f"  v_mov_b32 v{S[1]+14}, 0\n  v_mov_b32 v{S[1]+15}, 0")
    A("  s_barrier")
    if not os.environ.get("CHST"): stamp(A, 4)
    A(f"""
  buffer_load_dwordx4 {vr(KB[0],4)}, v1, s[20:23], s32 offen{SC}
  buffer_load_dwordx4 {vr(Q,4)}, v1, s[20:23], s34 offen{SC}
  s_mov_b64 exec, s[36:37]
  buffer_load_dwordx4 {vr(VB[0],4)}, v2, s[20:23], s35 offen{SC}
  buffer_load_dwordx4 {vr(VB[0]+4,4)}, v2, s[20:23], s35 offen offset:512{SC}
  s_mov_b64 exec, -1""")
    for j in range(1, 8):
        if j == 4: A("  s_add_u32 s34, s34, 4096")
        A(f"  buffer_load_dwordx4 {vr(Q+4*j,4)}, v1, s[20:23], s34 offen" + (f" offset:{(j%4)*1024}" if j % 4 else "") + SC)
    A(f"""
  s_add_u32 s30, s32, 1024
  s_add_u32 s31, s35, 1024
  s_waitcnt vmcnt(0)""")
    if not os.environ.get("CHST"): stamp(A, 5)
    A(f"""
  {MFMA} {vr(S[0],16)}, {vr(KB[0],4)}, {vr(Q,4)}, 0
  s_mov_b32 s38, 0
  s_nop 7
  s_nop 3
.p2align 6
{name}_aloop:""")
    for kb in range(2):
        for jq in range(8): attn_step(A, kb, jq)
    A(f"""
  s_add_u32 s38, s38, 1
  s_cmp_lt_u32 s38, 8
  s_cbranch_scc1 {name}_aloop
  v_cvt_pk_bf16_f32 v{P+7}, v{S[1]+14}, v{S[1]+15}
  s_nop 1
  {MFMA} {vr(O+16*7,16)}, {vr(VB[1]+4,4)}, {vr(P+4,4)}, {vr(O+16*7,16)}
  v_mov_b32 v4, 0
  v_mov_b32 v5, 0
  v_mov_b32 v6, 0
  v_mov_b32 v7, 0""")
    if not os.environ.get("CHST"): stamp(A, 6)
    for j in range(7):
        for r in range(0, 8, 2):
            A(f"  v_pk_fma_f32 v[4:5], {vr(O+16*j+r,2)}, v[6:7], v[4:5]")
    A(f"""
  s_mov_b32 s40, 0x1f800000                    ; 2^-64
  s_mov_b32 s41, 0x5f800000                    ; 2^64
  s_mov_b64 s[42:43], exec""")
    for j in range(8):
        if j == 7:
            for r in range(0, 8, 2):
                A(f"  v_pk_fma_f32 v[4:5], {vr(O+16*j+r,2)}, v[6:7], v[4:5]")
        A(f"""  v_cmp_le_f32 vcc, s40, v{O+16*j+8}
  s_and_b64 s[42:43], s[42:43], vcc
  v_cmp_ge_f32 vcc, s41, v{O+16*j+8}
  s_and_b64 s[42:43], s[42:43], vcc""")
    A(f"""
  v_add_f32 v4, v4, v5
  v_cmp_eq_f32 vcc, v4, v4
  s_and_b64 s[42:43], s[42:43], vcc
  s_cmp_eq_u64 s[42:43], exec
  s_cbranch_scc1 {name}_adone""")
    for r in range(8): A(f"  v_mov_b32 v{M+r}, 0xff800000")
    A(f"""
  s_mov_b32 s38, 0
  s_mov_b32 s30, s32
{name}_fb1:
  buffer_load_dwordx4 {vr(KB[0],4)}, v1, s[20:23], s30 offen{SC}
  s_waitcnt vmcnt(0)""")
    for j in range(8):
        A(f"  {MFMA} {vr(S[0],16)}, {vr(KB[0],4)}, {vr(Q+4*j,4)}, 0")
        A("  s_nop 7\n  s_nop 7")
        for r in range(0, 16, 2):
            A(f"  v_max3_f32 v{M+j}, v{S[0]+r}, v{S[0]+r+1}, v{M+j}")
    A(f"""
  s_add_u32 s30, s30, 1024
  s_add_u32 s38, s38, 1
  s_cmp_lt_u32 s38, 16
  s_cbranch_scc1 {name}_fb1""")
    for j in range(8):
        A(f"  v_mov_b32 v4, v{M+j}\n  s_nop 1\n  v_permlane32_swap_b32 v4, v{M+j}\n  s_nop 1\n  v_max_f32 v{M+j}, v4, v{M+j}")
    for r in range(128): A(f"  v_mov_b32 v{O+r}, 0")
    A(f"""
  s_mov_b32 s38, 0
  s_mov_b32 s30, s32
  s_mov_b32 s31, s35
{name}_fb2:
  buffer_load_dwordx4 {vr(KB[0],4)}, v1, s[20:23], s30 offen{SC}
  s_mov_b64 exec, s[36:37]
  buffer_load_dwordx4 {vr(VB[0],4)}, v2, s[20:23], s31 offen{SC}
  buffer_load_dwordx4 {vr(VB[0]+4,4)}, v2, s[20:23], s31 offen offset:512{SC}
  s_mov_b64 exec, -1
  s_waitcnt vmcnt(0)""")
    for j in range(8):
        A(f"  {MFMA} {vr(S[0],16)}, {vr(KB[0],4)}, {vr(Q+4*j,4)}, 0")
        A("  s_nop 7\n  s_nop 7")
        for r in range(16): A(f"  v_sub_f32 v{S[0]+r}, v{S[0]+r}, v{M+j}")
        for r in range(16): A(f"  v_exp_f32 v{S[0]+r}, v{S[0]+r}")
        A("  s_nop 0")
        for r in range(8): A(f"  v_cvt_pk_bf16_f32 v{P+r}, v{S[0]+2*r}, v{S[0]+2*r+1}")
        A("  s_nop 1")
        A(f"  {MFMA} {vr(O+16*j,16)}, {vr(VB[0],4)}, {vr(P,4)}, {vr(O+16*j,16)}")
        A(f"  {MFMA} {vr(O+16*j,16)}, {vr(VB[0]+4,4)}, {vr(P+4,4)}, {vr(O+16*j,16)}")
    A(f"""
  s_add_u32 s30, s30, 1024
  s_add_u32 s31, s31, 1024
  s_add_u32 s38, s38, 1
  s_cmp_lt_u32 s38, 16
  s_cbranch_scc1 {name}_fb2
  s_nop 7
  s_nop 7
{name}_adone:
  s_mul_i32 s40, s24, {PART_W}
  s_add_u32 s40, s40, {APART}
  v_add_u32 v4, s40, v1
  v_lshlrev_b32 v5, 3, v0
  v_add_u32 v5, s40, v5""")
    for j in range(8):
        A(f"  v_mov_b32 v{O+16*j+9}, v{M+j}")
        A(f"  ds_write_b128 v4, {vr(O+16*j,4)} offset:{j*TILE_P}")
        A(f"  ds_write_b128 v4, {vr(O+16*j+4,4)} offset:{j*TILE_P+1024}")
        A(f"  ds_write_b64 v5, {vr(O+16*j+8,2)} offset:{j*TILE_P+2048}")
    A(f"""
  s_waitcnt lgkmcnt(0)
  s_barrier""")
    merge_tile(A, 64, 16, "s24")
    A("  s_waitcnt vmcnt(0)\n  s_barrier")
    stamp_flush(A, 0, "s81", 8)
    A("  s_endpgm")

def gen_g(A, name):
    ACCB = 64; ACCA = 128; ACT = 192; WF = [16, 24]; D = 8
    vq = VmQ()
    srd(A, 20, 8, WS_TOTAL)
    srd(A, 12, 56, 1376*1024)
    A(f"""
  s_lshr_b32 s26, s25, 1
  s_lshl_b32 s26, s26, 3
  s_lshr_b32 s28, s2, 3
  s_and_b32 s28, s28, 7
  s_add_u32 s26, s26, s28                      ; tb
  s_and_b32 s28, s25, 1
  s_lshl_b32 s28, s28, 2
  s_lshr_b32 s30, s2, 6
  s_add_u32 s28, s28, s30                      ; nb
  s_mul_i32 s33, s24, 22
  s_cmp_eq_u32 s24, 3
  s_cselect_b32 s30, 1, 0
  s_sub_u32 s33, s33, s30
  s_cmp_ge_u32 s24, 2
  s_cselect_b32 s34, 21, 22                    ; n steps
  s_lshl_b32 s35, s33, 14
  s_lshl_b32 s36, s28, 7
  s_add_u32 s35, s35, s36                      ; W soffset
  s_mul_i32 s36, s26, 172                      ; 2*tb*86
  s_add_u32 s36, s36, s33
  s_lshl_b32 s36, s36, 10
  s_add_u32 s36, s36, {hex(WS_HF)}
  s_mov_b32 s37, {86*1024}
  s_lshl_b32 s38, s24, 14
  s_mov_b32 s42, 0x40000000
  v_lshrrev_b32 v2, 5, v0
  v_lshrrev_b32 v3, 1, v0
  v_and_b32 v3, 3, v3
  v_lshl_add_u32 v2, v2, 2, v3
  v_lshlrev_b32 v2, 10, v2
  v_lshrrev_b32 v3, 3, v0
  v_and_b32 v3, 3, v3
  v_lshl_add_u32 v2, v3, 5, v2
  v_and_b32 v3, 1, v0
  v_lshl_add_u32 v2, v3, 4, v2
  v_lshlrev_b32 v3, 4, v0                      ; v3 = lane*16
  v_lshrrev_b32 v4, 5, v0
  v_lshlrev_b32 v4, 9, v4                      ; hh*4*128
  v_lshrrev_b32 v5, 4, v0
  v_and_b32 v5, 1, v5
  v_lshl_add_u32 v4, v5, 7, v4
  v_and_b32 v5, 15, v0
  v_lshrrev_b32 v6, 2, v5
  v_lshl_add_u32 v4, v6, 5, v4
  v_and_b32 v6, 3, v5
  v_lshl_add_u32 v4, v6, 3, v4
  v_add_u32 v4, s38, v4
  s_waitcnt vmcnt(0)""")
    def issue_w(s, wso, masked):
        slot = s % D
        if masked:
            A(f"  s_cmp_gt_u32 s34, {s}\n  s_cselect_b32 s40, {wso}, s42"); w = "s40"
        else: w = wso
        A(f"  s_add_u32 m0, s38, {slot*2048}")
        A(f"  s_add_u32 s44, {w}, 8192")
        A(f"  buffer_load_dwordx4 v2, s[12:15], {w} offen lds")
        A(f"  s_add_u32 m0, s38, {slot*2048+1024}")
        A(f"  s_add_u32 {wso}, {wso}, 16384")
        A(f"  buffer_load_dwordx4 v2, s[12:15], s44 offen lds")
        vq.issue(("w", s)); vq.issue(("w", s))
    def issue_a(s, aso, masked):
        slot = s % D
        if masked:
            A(f"  s_cmp_gt_u32 s34, {s}\n  s_cselect_b32 s41, {aso}, s42"); a = "s41"
        else: a = aso
        A(f"  s_add_u32 s43, {a}, s37")
        A(f"  buffer_load_dwordx4 {vr(ACT+8*slot,4)}, v3, s[20:23], {a} offen{SC}")
        A(f"  buffer_load_dwordx4 {vr(ACT+8*slot+4,4)}, v3, s[20:23], s43 offen{SC}")
        A(f"  s_add_u32 {aso}, {aso}, 1024")
        vq.issue(("a", s)); vq.issue(("a", s))
    def trreads(s, buf):
        slot = s % D
        for t in range(2):
            A(f"  ds_read_b64_tr_b16 {vr(WF[buf]+4*t,2)}, v4 offset:{slot*2048 + t*256}")
            A(f"  ds_read_b64_tr_b16 {vr(WF[buf]+4*t+2,2)}, v4 offset:{slot*2048 + t*256 + 1024}")
    def run_steps(nstep, acc, wso, aso, masked, pre_w, pre_a):
        iw, ia = pre_w, pre_a
        vq.wait(A, {("w", 0)})
        trreads(0, 0)
        for s in range(nstep):
            slot = s % D; b = s & 1
            if s + 1 < nstep:
                vq.wait(A, {("w", s+1), ("a", s)})
                trreads(s + 1, b ^ 1)
                A("  s_waitcnt lgkmcnt(4)")
            else:
                vq.wait(A, {("a", s)})
                A("  s_waitcnt lgkmcnt(0)")
            for t in range(2):
                for u in range(2):
                    a = vr(acc+16*(2*t+u), 16)
                    A(f"  {MFMA} {a}, {vr(WF[b]+4*t,4)}, {vr(ACT+8*slot+4*u,4)}, {a}")
            if iw < nstep: issue_w(iw, wso, masked); iw += 1
            if ia < nstep: issue_a(ia, aso, masked); ia += 1
    for s in range(D): issue_w(s, "s35", True)
    for r in range(128): A(f"  v_mov_b32 v{ACCB+r}, 0")
    A(f"""
  s_barrier                                    ; E0
  s_cmp_eq_u32 s24, 0
  s_cbranch_scc1 {name}_g_hstore
  s_cmp_eq_u32 s24, 1
  s_cbranch_scc0 {name}_g_e2
  s_lshl_b32 s30, s29, 6
  s_add_u32 s30, s30, {hex(WS_FQ)}
  v_mov_b32 v5, s30
  v_mov_b32 v6, s3
  s_mov_b64 exec, 1
  buffer_store_dword v6, v5, s[20:23], 0 offen sc1
  s_mov_b64 exec, -1
  s_lshr_b32 s30, s2, 3
  s_and_b32 s30, s30, 3
  s_lshl_b32 s31, s25, 2
  s_add_u32 s30, s30, s31                      ; head
  s_lshr_b32 s30, s30, 1
  v_and_b32 v5, 15, v0
  v_lshlrev_b32 v5, 4, v5
  v_add_u32 v5, s30, v5
  v_lshlrev_b32 v5, 6, v5
  v_add_u32 v5, {hex(WS_FQ)}, v5""")
    poll(A, name, 5, 6, "A")
    A(f"""
  s_branch {name}_g_e2
{name}_g_hstore:
  s_lshr_b32 s30, s29, 4                       ; rb0
  s_and_b32 s31, s29, 15                       ; cg0
  s_mul_i32 s30, s30, {4*86}
  s_mul_i32 s31, s31, 6
  s_add_u32 s30, s30, s31
  s_lshl_b32 s30, s30, 10
  s_add_u32 s30, s30, {hex(WS_HF)}
  v_add_u32 v5, {HL}, v3""")
    for g in range(3):
        for k in range(8):
            A(f"  ds_read_b128 {vr(192+4*k,4)}, v5 offset:{(8*g+k)*1024}")
        for k in range(8):
            slot = 8*g + k; tl, sl_ = divmod(slot, 6)
            A(f"  s_add_u32 s40, s31, {sl_}\n  s_cmp_lt_u32 s40, 86\n  s_add_u32 s40, s30, {(tl*86+sl_)*1024}".replace("s_cmp_lt_u32 s40, 86\n  s_add_u32 s40, s30,", "s_cmp_lt_u32 s40, 86\n  s_cselect_b32 s41, s30, s42\n  s_add_u32 s40, s41,"))
            A(f"  s_waitcnt lgkmcnt({7-k})")
            A(f"  buffer_store_dwordx4 {vr(192+4*k,4)}, v3, s[20:23], s40 offen sc1")
        if g < 2: A("  s_nop 1")
    A(f"""
{name}_g_e2:
  s_barrier                                    ; E2
  s_cmp_lg_u32 s24, 0
  s_cbranch_scc1 {name}_g_nopost
  s_waitcnt vmcnt(0)
  s_lshl_b32 s30, s29, 6
  s_add_u32 s30, s30, {hex(WS_F1)}
  v_mov_b32 v5, s30
  v_mov_b32 v6, s3
  s_mov_b64 exec, 1
  buffer_store_dword v6, v5, s[20:23], 0 offen sc1
  s_mov_b64 exec, -1
{name}_g_nopost:
  s_lshr_b32 s30, s26, 1
  s_lshl_b32 s30, s30, 4
  v_and_b32 v5, 15, v0
  v_add_u32 v5, s30, v5
  v_lshlrev_b32 v5, 6, v5
  v_add_u32 v5, {hex(WS_F1)}, v5""")
    poll(A, name, 5, 6, "H")
    vq.drain()
    if not os.environ.get("CHST"): stamp(A, 3)
    A(f"""
  v_and_b32 v5, 31, v0
  v_lshlrev_b32 v5, 2, v5
  s_lshl_b32 s39, s26, 8
  s_add_u32 s39, s39, {hex(WS_G)}
  buffer_load_dword v8, v5, s[20:23], s39 offen sc1
  buffer_load_dword v9, v5, s[20:23], s39 offen offset:128 sc1""")
    vq.issue("g"); vq.issue("g")
    for s in range(D): issue_a(s, "s36", True)
    A(f"  s_setprio {GPRIO}")
    vq.q = [("w", s) for s in range(D)] + vq.q
    if os.environ.get("GSKIP"):
        A("  s_waitcnt vmcnt(0)"); vq.drain()
    else:
        run_steps(22, ACCB, "s35", "s36", True, D, D)
    if not os.environ.get("CHST"): stamp(A, 4)
    srd(A, 12, 58, 512*1024)
    A(f"""
  s_setprio 2
  s_lshl_b32 s35, s24, 17
  s_lshl_b32 s36, s28, 7
  s_add_u32 s35, s35, s36
  s_lshl_b32 s36, s26, 6                       ; (2tb)*32
  s_lshl_b32 s33, s24, 3
  s_add_u32 s36, s36, s33
  s_lshl_b32 s36, s36, 10
  s_add_u32 s36, s36, {hex(WS_OF)}
  s_mov_b32 s37, {32*1024}""")
    vq.drain()
    A("  s_waitcnt vmcnt(0)")
    for s in range(8): issue_w(s, "s35", False)
    A(f"""
  s_lshr_b32 s30, s2, 3
  s_and_b32 s30, s30, 3
  s_lshl_b32 s31, s25, 2
  s_mov_b32 s46, s28
  s_mov_b32 s47, s29
  s_add_u32 s28, s30, s31                      ; head
  s_lshr_b32 s29, s2, 5                        ; qb
  s_add_u32 s45, s24, 4
  v_mov_b32 v1, v3
  s_barrier                                    ; X""")
    merge_tile(A, 192, 32, "s45")
    A(f"""
  s_mov_b32 s28, s46
  s_mov_b32 s29, s47
  s_waitcnt vmcnt(0)
  s_barrier                                    ; Y
  s_cmp_lg_u32 s24, 0
  s_cbranch_scc1 {name}_g_nopost2
  s_lshr_b32 s30, s2, 3
  s_and_b32 s30, s30, 3
  s_lshl_b32 s31, s25, 2
  s_add_u32 s30, s30, s31                      ; head
  s_lshr_b32 s31, s2, 5                        ; qb
  s_lshl_b32 s31, s31, 5
  s_add_u32 s30, s30, s31
  s_lshl_b32 s30, s30, 6
  s_add_u32 s30, s30, {hex(WS_FO)}
  v_mov_b32 v5, s30
  v_mov_b32 v6, s3
  s_mov_b64 exec, 1
  buffer_store_dword v6, v5, s[20:23], 0 offen sc1
  s_mov_b64 exec, -1
{name}_g_nopost2:
  s_lshr_b32 s30, s26, 2
  s_lshl_b32 s30, s30, 5
  v_and_b32 v5, 31, v0
  v_add_u32 v5, s30, v5
  v_lshlrev_b32 v5, 6, v5
  v_add_u32 v5, {hex(WS_FO)}, v5""")
    if not os.environ.get("CHST"): stamp(A, 5)
    poll(A, name, 5, 6, "O")
    vq.drain()
    if not os.environ.get("CHST"): stamp(A, 6)
    for s in range(8): issue_a(s, "s36", False)
    vq.q = [("w", s) for s in range(8)] + vq.q
    run_steps(8, ACCA, "s35", "s36", False, 8, 8)
    A("  s_nop 7\n  s_nop 7")
    A("  v_sub_f32 v10, 1.0, v8\n  v_sub_f32 v11, 1.0, v9")
    for t in range(2):
        for u in range(2):
            for r in range(16):
                k = 16*(2*t+u)+r
                A(f"  v_mul_f32 v{ACCB+k}, v{10+u}, v{ACCB+k}")
                A(f"  v_fmac_f32 v{ACCB+k}, v{8+u}, v{ACCA+k}")
    A("  v_add_u32 v5, s38, v3")
    for tile in range(4):
        for q in range(4):
            A(f"  ds_write_b128 v5, {vr(ACCB+16*tile+4*q,4)} offset:{tile*4096+q*1024}")
    A(f"""
  s_waitcnt lgkmcnt(0)
  s_barrier
  s_lshl_b32 s40, s24, 12
  v_add_u32 v5, s40, v3""")
    for w in range(4):
        for q in range(4):
            A(f"  ds_read_b128 {vr(64+16*w+4*q,4)}, v5 offset:{w*16384+q*1024}")
    A("  s_waitcnt lgkmcnt(0)")
    for r in range(16):
        for w in range(1, 4): A(f"  v_add_f32 v{64+r}, v{64+r}, v{64+16*w+r}")
    for r in range(8): A(f"  v_cvt_pk_bf16_f32 v{16+r}, v{64+2*r}, v{65+2*r}")
    A(f"  s_load_dwordx2 s[60:61], s[0:1], {KA_OUT}\n  s_waitcnt lgkmcnt(0)")
    srd(A, 16, 60, 2048*1024)
    A(f"""
  s_and_b32 s41, s24, 1
  s_lshr_b32 s40, s24, 1
  s_lshl_b32 s42, s26, 6
  s_lshl_b32 s41, s41, 5
  s_add_u32 s42, s42, s41
  s_lshl_b32 s42, s42, 10
  s_lshl_b32 s43, s28, 7
  s_lshl_b32 s40, s40, 6
  s_add_u32 s43, s43, s40
  s_add_u32 s42, s42, s43
  v_and_b32 v5, 31, v0
  v_lshlrev_b32 v5, 10, v5
  v_lshrrev_b32 v6, 5, v0
  v_lshl_add_u32 v5, v6, 4, v5
  v_permlane32_swap_b32 v16, v18
  v_permlane32_swap_b32 v17, v19
  v_permlane32_swap_b32 v20, v22
  v_permlane32_swap_b32 v21, v23
  s_nop 1
  buffer_store_dwordx4 v[16:19], v5, s[16:19], s42 offen
  buffer_store_dwordx4 v[20:23], v5, s[16:19], s42 offen offset:32
  s_or_b32 s30, s2, s24
  s_cmp_lg_u32 s30, 0
  s_cbranch_scc1 {name}_g_noepoch
  v_mov_b32 v5, {WS_EPOCH}
  v_mov_b32 v6, s3
  s_mov_b64 exec, 1
  buffer_store_dword v6, v5, s[20:23], 0 offen
  s_mov_b64 exec, -1
{name}_g_noepoch:""")
    stamp_flush(A, 0, "s81", 8)
    A("  s_endpgm")

def gen_z(A, name=NAME):
    kernel_begin(A, name)
    stamp_init(A)
    A(f"""
  s_cmp_ge_u32 s2, 256
  s_cbranch_scc1 {name}_end
  s_load_dwordx4 s[4:7], s[0:1], {KA_AX}       ; A_x, wqkv
  s_load_dwordx4 s[52:55], s[0:1], {KA_WG}
  s_load_dwordx2 s[8:9], s[0:1], {KA_WS}
  s_load_dwordx2 s[10:11], s[0:1], {KA_GW}
  s_load_dwordx2 s[56:57], s[0:1], {KA_WD}
  s_load_dwordx2 s[58:59], s[0:1], {KA_WO}
  v_lshrrev_b32 v1, 6, v0
  v_and_b32 v0, 63, v0
  s_and_b32 s25, s2, 7
  s_lshr_b32 s27, s2, 3
  v_readfirstlane_b32 s24, v1
  s_and_b32 s26, s25, 3
  s_lshl_b32 s26, s26, 2
  s_and_b32 s27, s27, 3
  s_add_u32 s26, s26, s27                      ; rb = (j&3)*4 + ((c>>3)&3)
  s_lshr_b32 s27, s25, 2
  s_lshl_b32 s27, s27, 3
  s_lshr_b32 s28, s2, 5
  s_add_u32 s27, s27, s28                      ; cg = (j>>2)*8 + (c>>5)
  s_lshl_b32 s29, s26, 4
  s_add_u32 s29, s29, s27
  s_waitcnt lgkmcnt(0)
  s_load_dword s3, s[8:9], {WS_EPOCH}""")
    if asmlib.STAMPS: A("  s_mov_b32 s81, s24")
    A(f"""
  s_cmp_lt_u32 s24, 4
  s_cbranch_scc1 {name}_compute""")
    srd(A, 20, 8, WS_TOTAL)
    gen_loader(A, name)
    A("  s_mul_i32 s3, s3, 1664525\n  s_add_u32 s3, s3, 1013904223")
    gen_g(A, name)
    A(f"{name}_compute:")
    gen_p12_compute(A, name)
    A("  s_mul_i32 s3, s3, 1664525\n  s_add_u32 s3, s3, 1013904223")
    gen_attn(A, name)
    A(f"{name}_end:\n  s_endpgm")
    return kernel_desc(name, 256, 96)
```

```python
from common import *
import asmlib, os
from asmlib import stamp, stamp_init, stamp_flush
NST = 3
XB = 16384; WB = 12288
STG = XB + 3*WB
LDS_Z = 163840
HL = 65536
LAG = int(os.environ.get("LAG", "8"))
SC = " sc1"
APRIO = int(os.environ.get('APRIO', '1')); GPRIO = int(os.environ.get('GPRIO', '0'))
SPIN_MAX = 1 << 22
NAME = "gated_mix__mha_block__swiglu_ffn__prompt_kernel"

def poll(A, name, vaddr, vtmp, uid):
    A(f"""
  s_mov_b32 s62, 0
{name}_poll{uid}:
  buffer_load_dword v{vtmp}, v{vaddr}, s[20:23], 0 offen sc1
  s_waitcnt vmcnt(0)
  v_cmp_eq_u32 vcc, s3, v{vtmp}
  s_cmp_eq_u64 vcc, exec
  s_cbranch_scc1 {name}_poll{uid}_ok
  s_add_u32 s62, s62, 1
  s_cmp_lt_u32 s62, {SPIN_MAX}
  s_cbranch_scc0 {name}_poll{uid}_ok
  s_sleep 2
  s_branch {name}_poll{uid}
{name}_poll{uid}_ok:""")

def gen_loader(A, name):
    DX = 8; DQ = [9, 10, 11]; DG = [12, 13, 14]; DU = [15, 16, 17]
    A(f"""
  s_sub_u32 s24, s24, 4                        ; lw
  v_lshrrev_b32 v3, 3, v0                      ; l>>3
  v_lshrrev_b32 v4, 4, v0                      ; l>>4
  s_and_b32 s32, s24, 1
  s_lshl_b32 s32, s32, 2
  v_add_u32 v4, s32, v4                        ; f
  v_and_b32 v5, 7, v0
  v_xor_b32 v5, v5, v4                         ; c
  v_lshlrev_b32 v5, 4, v5
  v_lshl_add_u32 v{DX}, v3, 10, v5             ; voff_x
  s_lshl_b32 s34, s26, 17
  s_lshl_b32 s35, s24, 13
  s_add_u32 s34, s34, s35                      ; x soffset base = (rb*128 + 8*lw)*1024
  s_lshl_b32 s36, s24, 10
  s_waitcnt lgkmcnt(0)""")
    srd(A, 12, 4, 2048*1024)
    ROT = os.environ.get("ROT", "rb")
    if ROT == "cg": A("  s_and_b32 s28, s27, 7")
    elif ROT == "rb": A("  s_and_b32 s28, s26, 7")
    elif ROT == "m": A("  s_lshr_b32 s28, s2, 3\n  s_and_b32 s28, s28, 7")
    elif ROT == "mix": A("  s_lshr_b32 s28, s2, 3\n  s_lshr_b32 s46, s2, 6\n  s_add_u32 s28, s28, s46\n  s_and_b32 s28, s28, 7")
    elif ROT == "rb2": A("  s_and_b32 s28, s26, 3\n  s_lshl_b32 s28, s28, 1")
    elif ROT == "rb2c1": A("  s_and_b32 s28, s26, 3\n  s_lshl_b32 s28, s28, 1\n  s_and_b32 s46, s27, 1\n  s_add_u32 s28, s28, s46")
    elif ROT == "rb2c": A("  s_and_b32 s28, s26, 3\n  s_lshl_b32 s28, s28, 1\n  s_add_u32 s28, s28, s27\n  s_and_b32 s28, s28, 7")
    else: A("  s_mov_b32 s28, 0")
    def chunk_regs(kc):
        A(f"  s_add_u32 s49, s28, {kc}\n  s_and_b32 s49, s49, 7")
        A(f"  s_mul_i32 s50, s49, {64*3072}\n  s_mul_i32 s51, s49, {64*2752}\n  s_lshl_b32 s49, s49, 7")
        A(f"  s_add_u32 s49, s49, s34\n  s_add_u32 s50, s50, s35\n  s_add_u32 s51, s51, s48")
    def dma_x(kc, n):
        st = (kc % NST) * STG
        if n == 0 and kc > 0: chunk_regs(kc)
        A(f"  s_add_u32 m0, s36, {st + n*4096}")
        if kc == 0:
            if n == 0: A("  s_lshl_b32 s49, s28, 7\n  s_add_u32 s49, s49, s34")
        A(f"  s_add_u32 s38, s49, {n*32768}")
        A(f"  buffer_load_dwordx4 v{DX}, s[12:15], s38 offen lds")
    for n in range(4): dma_x(0, n)
    srd(A, 16, 6, 512*3072)
    srd(A, 40, 52, 512*2752)
    srd(A, 44, 54, 512*2752)
    A(f"""
  v_lshrrev_b32 v4, 1, v0
  v_and_b32 v4, 3, v4                          ; r
  v_and_b32 v5, 1, v0
  v_lshlrev_b32 v5, 4, v5                      ; half*16
  s_lshl_b32 s33, s27, 6                       ; cg*64 bytes (qkv)
  s_mul_i32 s39, s27, 192                      ; cg*192 bytes (ffn)""")
    for p in range(3):
        A(f"""
  v_add_u32 v6, {8*p}, v3                      ; b
  v_mul_u32_u24 v7, 43, v6
  v_lshrrev_b32 v7, 8, v7                      ; kgl = b/6
  v_mul_u32_u24 v18, 6, v7
  v_sub_u32 v6, v6, v18                        ; s = b%6
  v_lshl_add_u32 v7, v7, 2, v4
  v_mul_u32_u24 v18, 3072, v7
  v_lshrrev_b32 v19, 1, v6
  v_lshl_add_u32 v18, v19, 10, v18             ; + (s>>1)*1024
  v_and_b32 v19, 1, v6
  v_lshl_add_u32 v18, v19, 5, v18              ; + (s&1)*32
  v_add3_u32 v{DQ[p]}, v18, v5, s33
  v_mul_u32_u24 v18, 2752, v7
  v_add3_u32 v18, v18, v5, s39
  v_lshl_add_u32 v{DG[p]}, v6, 5, v18
  v_xor_b32 v6, 1, v6
  v_lshl_add_u32 v{DU[p]}, v6, 5, v18""")
    A(f"""
  s_mul_i32 s35, s24, {16*3072}
  s_mul_i32 s48, s24, {16*2752}
  s_mul_i32 s37, s24, 3072
  s_add_u32 s37, s37, {XB}""")
    def dma_list(kc):
        st = (kc % NST) * STG
        L = [ (lambda n=n: dma_x(kc, n)) for n in range(4) ]
        for reg, (srdr, pats, sb, rs) in enumerate(((16, DQ, 35, 3072), (40, DG, 48, 2752), (44, DU, 48, 2752))):
            for p in range(3):
                def f(reg=reg, srdr=srdr, pats=pats, sb=sb, rs=rs, p=p):
                    if kc == 0 and reg == 0 and p == 0: chunk_regs(0)
                    A(f"  s_add_u32 m0, s37, {st + reg*WB + p*1024}")
                    A(f"  s_nop 0")
                    A(f"  buffer_load_dwordx4 v{pats[p]}, s[{srdr}:{srdr+3}], s{50 if reg == 0 else 51} offen lds")
                L.append(f)
        return L
    stream = []
    for kc in range(8): stream += dma_list(kc)
    pos = [4]
    def issue_upto(n):
        while pos[0] < n:
            stream[pos[0]](); pos[0] += 1
    issue_upto(13)
    A(f"""
  s_lshl_b32 s30, s26, 7
  s_lshl_b32 s31, s27, 3
  s_add_u32 s30, s30, s31
  s_lshl_b32 s31, s24, 1
  s_add_u32 s30, s30, s31                      ; token0
  s_lshl_b32 s31, s30, 10
  v_lshlrev_b32 v2, 4, v0
  buffer_load_dwordx4 v[20:23], v2, s[12:15], s31 offen
  buffer_load_dwordx4 v[24:27], v2, s[12:15], s31 offen offset:1024
  global_load_dwordx4 v[28:31], v2, s[10:11]""")
    stamp(A, 1)
    for i in range(8):
        issue_upto(min(13*(i+1) + LAG, 104))
        younger = pos[0] - 13*(i+1) + (3 if i == 0 else 0)
        if os.environ.get("CHST") and i in (1, 3, 5, 7): stamp(A, 3 + i//2)
        A(f"  s_waitcnt vmcnt({younger})")
        A("  s_barrier")
        if i == 1:
            A("""
  v_lshlrev_b32 v32, 16, v28
  v_and_b32 v33, 0xffff0000, v28
  v_lshlrev_b32 v34, 16, v29
  v_and_b32 v35, 0xffff0000, v29
  v_lshlrev_b32 v36, 16, v30
  v_and_b32 v37, 0xffff0000, v30
  v_lshlrev_b32 v38, 16, v31
  v_and_b32 v39, 0xffff0000, v31""")
            for t, base, acc in ((0, 20, 40), (1, 24, 41)):
                for j in range(4):
                    A(f"  v_lshlrev_b32 v42, 16, v{base+j}")
                    A(f"  v_and_b32 v43, 0xffff0000, v{base+j}")
                    if j == 0: A(f"  v_mul_f32 v{acc}, v42, v32")
                    else: A(f"  v_fmac_f32 v{acc}, v42, v{32+2*j}")
                    A(f"  v_fmac_f32 v{acc}, v43, v{33+2*j}")
            for ctl in ("row_shr:1", "row_shr:2", "row_shr:4", "row_shr:8"):
                A("  s_nop 1")
                A(f"  v_add_f32_dpp v40, v40, v40 {ctl} row_mask:0xf bank_mask:0xf bound_ctrl:0")
                A(f"  v_add_f32_dpp v41, v41, v41 {ctl} row_mask:0xf bank_mask:0xf bound_ctrl:0")
            A(f"""  s_nop 1
  v_readlane_b32 s60, v40, 15
  v_readlane_b32 s61, v40, 31
  v_readlane_b32 s62, v40, 47
  v_readlane_b32 s63, v40, 63
  v_readlane_b32 s46, v41, 15
  v_readlane_b32 s47, v41, 31
  v_readlane_b32 s32, v41, 47
  v_readlane_b32 s33, v41, 63
  s_nop 1
  v_mov_b32 v44, s60
  v_add_f32 v44, s61, v44
  v_add_f32 v44, s62, v44
  v_add_f32 v44, s63, v44
  v_mov_b32 v45, s46
  v_add_f32 v45, s47, v45
  v_add_f32 v45, s32, v45
  v_add_f32 v45, s33, v45
  v_cmp_eq_u32 vcc, 1, v0
  s_nop 1
  v_cndmask_b32 v44, v44, v45, vcc             ; lane1 -> token1, others token0
  v_mul_f32 v44, 0xbfb8aa3b, v44               ; -log2e * z
  v_exp_f32 v44, v44
  s_nop 0
  v_add_f32 v44, 1.0, v44
  v_rcp_f32 v44, v44
  s_lshl_b32 s60, s30, 2
  v_lshlrev_b32 v45, 2, v0
  v_add_u32 v45, s60, v45
  v_add_u32 v45, {hex(WS_G)}, v45""".replace("s46", "s39").replace("s47", "s31"))
    A(f"""
  v_cmp_gt_u32 vcc, 2, v0
  s_and_saveexec_b64 s[48:49], vcc
  buffer_store_dword v44, v45, s[20:23], 0 offen{SC}
  s_mov_b64 exec, s[48:49]""")
    stamp(A, 2)
    A("  s_barrier")

def gen_touch(A):
    srd(A, 12, 4, 2048*1024)
    srd(A, 16, 6, 512*3072)
    srd(A, 40, 52, 512*2752)
    srd(A, 44, 54, 512*2752)
    A(f"""
  ; x: rows 128rb + 16*(cg&7) + 4w + (l>>4)... 16 rows x 8 lines = 128 lines per CU -> 32 per wave: lanes 0..31 useful
  s_and_b32 s30, s27, 7
  s_lshl_b32 s30, s30, 4
  s_lshl_b32 s31, s26, 7
  s_add_u32 s30, s30, s31
  s_lshl_b32 s31, s24, 2
  s_add_u32 s30, s30, s31                      ; row0 = 128rb + 16(cg&7) + 4w
  s_lshl_b32 s30, s30, 10
  v_and_b32 v48, 31, v0
  v_lshlrev_b32 v48, 7, v48
  buffer_load_dword v240, v48, s[12:15], s30 offen
  ; weights: rows 128*(rb&3) + 32w + (l&31) ; half = l>>5 selects line
  s_and_b32 s30, s26, 3
  s_lshl_b32 s30, s30, 7
  s_lshl_b32 s31, s24, 5
  s_add_u32 s30, s30, s31
  v_and_b32 v48, 31, v0
  v_lshrrev_b32 v49, 5, v0
  v_mul_u32_u24 v50, 3072, v48
  v_lshl_add_u32 v50, v49, 10, v50
  s_mul_i32 s31, s30, 3072
  s_lshl_b32 s32, s27, 6
  s_add_u32 s31, s31, s32
  buffer_load_dword v241, v50, s[16:19], s31 offen
  v_mul_u32_u24 v51, 3072, v48
  s_add_u32 s31, s31, 2048
  s_mov_b32 exec_hi, 0
  buffer_load_dword v242, v51, s[16:19], s31 offen
  s_mov_b32 exec_hi, -1
  v_mul_u32_u24 v50, 2752, v48
  v_lshl_add_u32 v50, v49, 7, v50
  s_mul_i32 s31, s30, 2752
  s_mul_i32 s32, s27, 192
  s_add_u32 s31, s31, s32
  buffer_load_dword v243, v50, s[40:43], s31 offen
  buffer_load_dword v244, v50, s[44:47], s31 offen""")
ACC = 64; VACC = 192
def gen_p12_compute(A, name):
    XA = [2, 3, 4, 5]; XBr = [6, 7, 8, 9]; WA = [10, 11, 12, 13, 14]
    F = [[208, 212, 216, 220, 224, 228, 232], [16, 20, 24, 28, 32, 36, 40]]
    A("  s_waitcnt lgkmcnt(0)")
    TOUCH = int(os.environ.get("TOUCH", "0"))
    if TOUCH == 1:
        gen_touch(A)
    A(f"""
  s_lshr_b32 s30, s24, 1                       ; i
  s_and_b32 s31, s24, 1                        ; j
  v_and_b32 v48, 31, v0                        ; token
  v_lshrrev_b32 v49, 5, v0                     ; hh
  v_lshrrev_b32 v50, 1, v48
  v_and_b32 v50, 7, v50                        ; f
  s_lshl_b32 s32, s30, 1
  s_add_u32 s32, s32, s31                      ; tile a = 2i+j
  s_xor_b32 s33, s32, 1                        ; tile b
  s_lshl_b32 s34, s32, 12
  s_lshl_b32 s35, s33, 12
  v_lshlrev_b32 v51, 7, v48""")
    for s in range(4):
        A(f"  v_add_u32 v52, {2*s}, v49")
        A(f"  v_xor_b32 v52, v52, v50")
        A(f"  v_lshl_add_u32 v52, v52, 4, v51")
        A(f"  v_add_u32 v{XA[s]}, s34, v52")
        A(f"  v_add_u32 v{XBr[s]}, s35, v52")
    A(f"""
  v_and_b32 v48, 15, v0                        ; i16
  v_lshrrev_b32 v50, 4, v0
  v_and_b32 v50, 1, v50                        ; u / gu
  v_mul_u32_u24 v51, 1536, v49
  v_lshrrev_b32 v52, 2, v48
  v_lshl_add_u32 v51, v52, 5, v51
  v_and_b32 v52, 3, v48
  v_lshl_add_u32 v51, v52, 3, v51              ; common
  v_lshl_add_u32 v53, v50, 7, v51
  v_add_u32 v53, {XB}, v53
  v_add_u32 v{WA[4]}, 512, v53
  v_mul_u32_u24 v54, {WB}, v50
  v_add_u32 v54, v54, v51
  v_add_u32 v54, {XB+WB}, v54
  s_cmp_eq_u32 s31, 0
  s_cbranch_scc0 {name}_wj1
  v_mov_b32 v{WA[0]}, v53                      ; Q
  v_add_u32 v{WA[1]}, 256, v53                 ; K
  v_xor_b32 v55, 0, v50
  v_lshl_add_u32 v{WA[2]}, v55, 7, v54         ; F0
  v_xor_b32 v55, 1, v50
  v_lshl_add_u32 v{WA[3]}, v55, 7, v54         ; F1
  s_branch {name}_wdone
{name}_wj1:""")
    for t in range(4):
        A(f"  v_xor_b32 v55, {2+t}, v50\n  v_lshl_add_u32 v{WA[t]}, v55, 7, v54")
    A(f"{name}_wdone:")
    for r in range(144): A(f"  v_mov_b32 v{64+r}, 0")
    def rd_list(buf, s):
        L = [f"  ds_read_b128 {vr(F[buf][0],4)}, v{XA[s]}", f"  ds_read_b128 {vr(F[buf][1],4)}, v{XBr[s]}"]
        for t in range(5):
            L.append(f"  ds_read_b64_tr_b16 {vr(F[buf][2+t],2)}, v{WA[t]} offset:{s*3072}")
            L.append(f"  ds_read_b64_tr_b16 {vr(F[buf][2+t]+2,2)}, v{WA[t]} offset:{s*3072 + 768}")
        return L
    def mf_list(buf):
        L = []
        for t in range(4):
            for x in range(2):
                a = vr(ACC + 32*t + 16*x, 16)
                L.append(f"  {MFMA} {a}, {vr(F[buf][2+t],4)}, {vr(F[buf][x],4)}, {a}")
        L.append(f"  {MFMA} {vr(VACC,16)}, {vr(F[buf][0],4)}, {vr(F[buf][6],4)}, {vr(VACC,16)}")
        return L
    def interleave(mf, rd):
        k = 0
        for i, m in enumerate(mf):
            A(m)
            n = 2 if i < 6 else 0
            for _ in range(n):
                if k < len(rd): A(rd[k]); k += 1
        while k < len(rd): A(rd[k]); k += 1
    def advance(kc):
        d = STG if ((kc+1) % NST) != 0 else -(NST-1)*STG
        for r in XA + XBr + WA:
            if d > 0: A(f"  v_add_u32 v{r}, {d}, v{r}")
            else: A(f"  v_subrev_u32 v{r}, {-d}, v{r}")
    stamp(A, 1)
    A("  s_barrier")
    if TOUCH == 2:
        A("  s_mov_b32 s56, s30\n  s_mov_b32 s57, s31\n  s_mov_b32 s58, s32\n  s_mov_b32 s59, s33")
        gen_touch(A)
        A("  s_mov_b32 s30, s56\n  s_mov_b32 s31, s57\n  s_mov_b32 s32, s58\n  s_mov_b32 s33, s59")
    for l in rd_list(0, 0): A(l)
    for kc in range(8):
        for s in range(4):
            b = s & 1
            A("  s_waitcnt lgkmcnt(0)")
            if s < 3:
                interleave(mf_list(b), rd_list(b ^ 1, s + 1))
            else:
                if kc < 7:
                    advance(kc)
                    if os.environ.get("CHST") and kc in (0, 2, 4, 6): stamp(A, 3 + kc//2)
                    A("  s_barrier")
                    interleave(mf_list(b), rd_list(0, 0))
                else:
                    A("  s_barrier")
                    interleave(mf_list(b), [])
    stamp(A, 2)
    srd(A, 44, 8, WS_TOTAL)
    A(f"""
  s_nop 7
  v_lshlrev_b32 v2, 4, v0                      ; lane*16
  s_lshl_b32 s36, s26, 2
  s_add_u32 s37, s36, s32
  s_add_u32 s38, s36, s33
  v_and_b32 v3, 15, v0
  v_lshlrev_b32 v3, 4, v3
  v_lshrrev_b32 v4, 5, v0
  v_lshl_add_u32 v3, v4, 8, v3
  v_lshrrev_b32 v4, 4, v0
  v_and_b32 v4, 1, v4
  v_lshl_add_u32 v3, v4, 16, v3
  s_lshl_b32 s39, s27, 7                       ; (2cg)*64
  s_add_u32 s40, s39, s37
  s_lshl_b32 s40, s40, 10                      ; (head 2cg, tile a) * 1024
  s_add_u32 s41, s39, s38
  s_lshl_b32 s41, s41, 10                      ; (head 2cg, tile b)
  s_add_u32 s42, s40, {hex(WS_VF)}""")
    for r in range(8): A(f"  v_cvt_pk_bf16_f32 v{16+r}, v{VACC+2*r}, v{VACC+2*r+1}")
    A(f"""
  buffer_store_dwordx4 v[16:19], v3, s[44:47], s42 offen{SC}
  buffer_store_dwordx4 v[20:23], v3, s[44:47], s42 offen offset:512{SC}
  s_mov_b32 s50, 0xbfb8aa3b
  s_cmp_eq_u32 s31, 0
  s_cbranch_scc0 {name}_epi_j1""")
    A(f"  s_mov_b32 s55, {hex(f2u(QSCALE))}")
    for x, so in ((0, 40), (1, 41)):
        a = ACC + 16*x
        for r in range(16): A(f"  v_mul_f32 v{a+r}, s55, v{a+r}")
        for r in range(8): A(f"  v_cvt_pk_bf16_f32 v{24+r}, v{a+2*r}, v{a+2*r+1}")
        A(f"  s_add_u32 s34, s{so}, {hex(WS_QF)}\n  s_add_u32 s35, s34, 65536")
        A(f"  buffer_store_dwordx4 v[24:27], v2, s[44:47], s34 offen{SC}\n  buffer_store_dwordx4 v[28:31], v2, s[44:47], s35 offen{SC}")
        a = ACC + 32 + 16*x
        for r in range(8): A(f"  v_cvt_pk_bf16_f32 v{32+r}, v{a+2*r}, v{a+2*r+1}")
        A(f"  s_add_u32 s34, s{so}, {hex(WS_KF)}\n  s_add_u32 s35, s34, 65536")
        A(f"  buffer_store_dwordx4 v[32:35], v2, s[44:47], s34 offen{SC}\n  buffer_store_dwordx4 v[36:39], v2, s[44:47], s35 offen{SC}")
    def silu_tile(t, slab_off):
        for x, tl in ((0, 32), (1, 33)):
            a = ACC + 32*t + 16*x
            for r in range(8): A(f"  v_mul_f32 v{40+r}, s50, v{a+r}")
            for r in range(8): A(f"  v_exp_f32 v{40+r}, v{40+r}")
            for r in range(8): A(f"  v_mul_f32 v{a+8+r}, v{a+r}, v{a+8+r}")
            for r in range(8): A(f"  v_add_f32 v{40+r}, 1.0, v{40+r}")
            for r in range(8): A(f"  v_rcp_f32 v{40+r}, v{40+r}")
            A(f"  s_mul_i32 s54, s{tl}, 6144\n  s_add_u32 s54, s54, {HL + slab_off*1024}")
            for r in range(8): A(f"  v_mul_f32 v{40+r}, v{a+8+r}, v{40+r}")
            d = 48 + 4*x
            A(f"  v_add_u32 v56, s54, v2")
            for r in range(4): A(f"  v_cvt_pk_bf16_f32 v{d+r}, v{40+2*r}, v{41+2*r}")
            A(f"  ds_write_b128 v56, {vr(d,4)}")
    silu_tile(2, 0); silu_tile(3, 1)
    A(f"  s_branch {name}_epi_done\n{name}_epi_j1:")
    for t in range(4): silu_tile(t, 2 + t)
    A(f"{name}_epi_done:")
    A("  s_waitcnt vmcnt(0) lgkmcnt(0)")
    if not os.environ.get("CHST"): stamp(A, 3)
    A("  s_barrier")

Q = 32; O = 64; S = [192, 208]; P = 224; KB = [16, 20]; VB = [24, 232]; M = 240
APART = 65536; TILE_P = 2560; PART_W = 8*TILE_P
ORDER = "e0 p7 e1 e2 e3 Bp L1 c0 e4 e5 c1 e6 e7 c2 e8 W S L2 e9 c3 e10 e11 c4 e12 e13 A c5 e14 e15 c6"
def attn_step(A, kb, jq):
    b = jq & 1; So, Sn = S[b], S[b ^ 1]
    pj = (jq - 1) % 8; pkb = kb if jq > 0 else kb ^ 1
    nj = (jq + 1) % 8; nkb = kb if jq < 7 else kb ^ 1
    for tok in ORDER.split():
        if tok[0] == 'e':
            i = int(tok[1:]); A(f"  v_exp_f32 v{So+i}, v{So+i}")
        elif tok[0] == 'c':
            i = int(tok[1:]); A(f"  v_cvt_pk_bf16_f32 v{P+i}, v{So+2*i}, v{So+2*i+1}")
        elif tok[0] == 'p':
            i = int(tok[1:]); A(f"  v_cvt_pk_bf16_f32 v{P+i}, v{Sn+2*i}, v{Sn+2*i+1}")
        elif tok == 'S':
            A(f"  {MFMA} {vr(Sn,16)}, {vr(KB[nkb],4)}, {vr(Q+4*nj,4)}, 0")
        elif tok == 'A':
            A(f"  {MFMA} {vr(O+16*jq,16)}, {vr(VB[kb],4)}, {vr(P,4)}, {vr(O+16*jq,16)}")
        elif tok == 'Bp':
            A(f"  {MFMA} {vr(O+16*pj,16)}, {vr(VB[pkb]+4,4)}, {vr(P+4,4)}, {vr(O+16*pj,16)}")
        elif tok == 'L1':
            if jq == 0:
                A(f"  buffer_load_dwordx4 {vr(KB[kb^1],4)}, v1, s[20:23], s30 offen{SC}")
            elif jq == 1:
                A(f"  s_add_u32 s30, s30, 1024")
            elif jq == 2 and kb == 0:
                A(f"  s_cmp_eq_u32 s38, 7")
                A(f"  s_cselect_b32 s30, s39, s30")
        elif tok == 'L2':
            if jq == 0:
                A(f"  s_mov_b64 exec, s[36:37]")
                A(f"  buffer_load_dwordx4 {vr(VB[kb^1],4)}, v2, s[20:23], s31 offen{SC}")
                A(f"  buffer_load_dwordx4 {vr(VB[kb^1]+4,4)}, v2, s[20:23], s31 offen offset:512{SC}")
                A(f"  s_mov_b64 exec, -1")
            elif jq == 1:
                A(f"  s_add_u32 s31, s31, 1024")
            elif jq == 2 and kb == 0:
                A(f"  s_cmp_eq_u32 s38, 7")
                A(f"  s_cselect_b32 s31, s39, s31")
        elif tok == 'W':
            if jq == 7: A("  s_waitcnt vmcnt(0)")
        else: raise Exception(tok)
def merge_tile(A, R, T, tile_s, unit_imm=None):
    A(f"""
  s_mul_i32 s40, {tile_s}, {TILE_P}
  s_add_u32 s40, s40, {APART}
  v_add_u32 v{T}, s40, v1
  v_lshrrev_b32 v{T+1}, 1, v1
  v_add_u32 v{T+1}, s40, v{T+1}
  v_add_u32 v{T+2}, {2*PART_W}, v{T}
  v_add_u32 v{T+3}, {2*PART_W}, v{T+1}""")
    for w in range(4):
        a4, a5 = (T, T+1) if w < 2 else (T+2, T+3)
        o = (w % 2)*PART_W
        A(f"  ds_read_b64 {vr(R+10*w+8,2)}, v{a5} offset:{o+2048}")
    for w in range(4):
        a4, a5 = (T, T+1) if w < 2 else (T+2, T+3)
        o = (w % 2)*PART_W
        A(f"  ds_read_b128 {vr(R+10*w,4)}, v{a4} offset:{o}")
        A(f"  ds_read_b128 {vr(R+10*w+4,4)}, v{a4} offset:{o+1024}")
    A(f"""
  s_lshl_b32 s41, s29, 3
  s_add_u32 s41, s41, {tile_s}
  s_lshl_b32 s41, s41, 5
  s_add_u32 s41, s41, s28                      ; *32 + head
  s_lshl_b32 s41, s41, 10
  s_add_u32 s41, s41, {hex(WS_OF)}
  s_waitcnt lgkmcnt(8)""")
    A(f"  v_max3_f32 v{T}, v{R+9}, v{R+19}, v{R+29}")
    A(f"  v_max_f32 v{T}, v{T}, v{R+39}")
    for w in range(4): A(f"  v_sub_f32 v{T+1+w}, v{R+10*w+9}, v{T}")
    for w in range(4): A(f"  v_exp_f32 v{T+1+w}, v{T+1+w}")
    A("  s_nop 0")
    A(f"  v_mul_f32 v{T+5}, v{T+1}, v{R+8}")
    for w in range(1, 4): A(f"  v_fmac_f32 v{T+5}, v{T+1+w}, v{R+10*w+8}")
    A(f"  v_rcp_f32 v{T+5}, v{T+5}")
    A("  s_nop 0")
    for w in range(4): A(f"  v_mul_f32 v{T+1+w}, v{T+5}, v{T+1+w}")
    A("  s_waitcnt lgkmcnt(0)")
    for r in range(8):
        A(f"  v_mul_f32 v{T+6+r}, v{T+1}, v{R+r}")
        for w in range(1, 4): A(f"  v_fmac_f32 v{T+6+r}, v{T+1+w}, v{R+10*w+r}")
    for r in range(4): A(f"  v_cvt_pk_bf16_f32 v{R+r}, v{T+6+2*r}, v{T+7+2*r}")
    A(f"  buffer_store_dwordx4 {vr(R,4)}, v1, s[20:23], s41 offen{SC}")
def gen_attn(A, name):
    srd(A, 20, 8, WS_TOTAL)
    A(f"""
  s_setprio {APRIO}
  s_lshr_b32 s28, s2, 3
  s_and_b32 s28, s28, 3
  s_lshl_b32 s29, s25, 2
  s_add_u32 s28, s28, s29                      ; head
  s_lshr_b32 s29, s2, 5                        ; qb
  v_lshlrev_b32 v1, 4, v0                      ; lane*16
  v_and_b32 v2, 15, v0
  v_lshlrev_b32 v2, 4, v2
  v_lshrrev_b32 v3, 5, v0
  v_lshl_add_u32 v2, v3, 8, v2                 ; hh*256 + d*16
  s_mov_b32 s36, 0x0000ffff
  s_mov_b32 s37, 0x0000ffff
  s_mov_b32 s39, 0x40000000
  s_lshl_b32 s33, s28, 16                      ; head*64*1024
  s_lshl_b32 s34, s29, 13                      ; qb*8*1024
  s_add_u32 s34, s34, s33
  s_add_u32 s34, s34, {hex(WS_QF)}
  s_lshl_b32 s35, s24, 14
  s_add_u32 s35, s35, s33
  s_add_u32 s32, s35, {hex(WS_KF)}
  s_add_u32 s35, s35, {hex(WS_VF)}             ; V base
  v_mov_b32 v4, 0x3f803f80
  v_and_b32 v5, 27, v0
  v_cmp_eq_u32 vcc, 16, v5
  v_mov_b32 v5, 0
  s_nop 0
  v_cndmask_b32 v4, v5, v4, vcc""")
    for b in range(2):
        for r in range(8): A(f"  v_mov_b32 v{VB[b]+r}, v4")
    for r in range(128): A(f"  v_mov_b32 v{O+r}, 0")
    for r in range(8): A(f"  v_mov_b32 v{P+r}, 0")
    for r in range(8): A(f"  v_mov_b32 v{M+r}, 0")
    A(f"  v_mov_b32 v{S[1]+14}, 0\n  v_mov_b32 v{S[1]+15}, 0")
    A("  s_barrier")
    if not os.environ.get("CHST"): stamp(A, 4)
    A(f"""
  buffer_load_dwordx4 {vr(KB[0],4)}, v1, s[20:23], s32 offen{SC}
  buffer_load_dwordx4 {vr(Q,4)}, v1, s[20:23], s34 offen{SC}
  s_mov_b64 exec, s[36:37]
  buffer_load_dwordx4 {vr(VB[0],4)}, v2, s[20:23], s35 offen{SC}
  buffer_load_dwordx4 {vr(VB[0]+4,4)}, v2, s[20:23], s35 offen offset:512{SC}
  s_mov_b64 exec, -1""")
    for j in range(1, 8):
        if j == 4: A("  s_add_u32 s34, s34, 4096")
        A(f"  buffer_load_dwordx4 {vr(Q+4*j,4)}, v1, s[20:23], s34 offen" + (f" offset:{(j%4)*1024}" if j % 4 else "") + SC)
    A(f"""
  s_add_u32 s30, s32, 1024
  s_add_u32 s31, s35, 1024
  s_waitcnt vmcnt(0)""")
    if not os.environ.get("CHST"): stamp(A, 5)
    A(f"""
  {MFMA} {vr(S[0],16)}, {vr(KB[0],4)}, {vr(Q,4)}, 0
  s_mov_b32 s38, 0
  s_nop 7
  s_nop 3
.p2align 6
{name}_aloop:""")
    for kb in range(2):
        for jq in range(8): attn_step(A, kb, jq)
    A(f"""
  s_add_u32 s38, s38, 1
  s_cmp_lt_u32 s38, 8
  s_cbranch_scc1 {name}_aloop
  v_cvt_pk_bf16_f32 v{P+7}, v{S[1]+14}, v{S[1]+15}
  s_nop 1
  {MFMA} {vr(O+16*7,16)}, {vr(VB[1]+4,4)}, {vr(P+4,4)}, {vr(O+16*7,16)}
  v_mov_b32 v4, 0
  v_mov_b32 v5, 0
  v_mov_b32 v6, 0
  v_mov_b32 v7, 0""")
    if not os.environ.get("CHST"): stamp(A, 6)
    for j in range(7):
        for r in range(0, 8, 2):
            A(f"  v_pk_fma_f32 v[4:5], {vr(O+16*j+r,2)}, v[6:7], v[4:5]")
    A(f"""
  s_mov_b32 s40, 0x1f800000                    ; 2^-64
  s_mov_b32 s41, 0x5f800000                    ; 2^64
  s_mov_b64 s[42:43], exec""")
    for j in range(8):
        if j == 7:
            for r in range(0, 8, 2):
                A(f"  v_pk_fma_f32 v[4:5], {vr(O+16*j+r,2)}, v[6:7], v[4:5]")
        A(f"""  v_cmp_le_f32 vcc, s40, v{O+16*j+8}
  s_and_b64 s[42:43], s[42:43], vcc
  v_cmp_ge_f32 vcc, s41, v{O+16*j+8}
  s_and_b64 s[42:43], s[42:43], vcc""")
    A(f"""
  v_add_f32 v4, v4, v5
  v_cmp_eq_f32 vcc, v4, v4
  s_and_b64 s[42:43], s[42:43], vcc
  s_cmp_eq_u64 s[42:43], exec
  s_cbranch_scc1 {name}_adone""")
    for r in range(8): A(f"  v_mov_b32 v{M+r}, 0xff800000")
    A(f"""
  s_mov_b32 s38, 0
  s_mov_b32 s30, s32
{name}_fb1:
  buffer_load_dwordx4 {vr(KB[0],4)}, v1, s[20:23], s30 offen{SC}
  s_waitcnt vmcnt(0)""")
    for j in range(8):
        A(f"  {MFMA} {vr(S[0],16)}, {vr(KB[0],4)}, {vr(Q+4*j,4)}, 0")
        A("  s_nop 7\n  s_nop 7")
        for r in range(0, 16, 2):
            A(f"  v_max3_f32 v{M+j}, v{S[0]+r}, v{S[0]+r+1}, v{M+j}")
    A(f"""
  s_add_u32 s30, s30, 1024
  s_add_u32 s38, s38, 1
  s_cmp_lt_u32 s38, 16
  s_cbranch_scc1 {name}_fb1""")
    for j in range(8):
        A(f"  v_mov_b32 v4, v{M+j}\n  s_nop 1\n  v_permlane32_swap_b32 v4, v{M+j}\n  s_nop 1\n  v_max_f32 v{M+j}, v4, v{M+j}")
    for r in range(128): A(f"  v_mov_b32 v{O+r}, 0")
    A(f"""
  s_mov_b32 s38, 0
  s_mov_b32 s30, s32
  s_mov_b32 s31, s35
{name}_fb2:
  buffer_load_dwordx4 {vr(KB[0],4)}, v1, s[20:23], s30 offen{SC}
  s_mov_b64 exec, s[36:37]
  buffer_load_dwordx4 {vr(VB[0],4)}, v2, s[20:23], s31 offen{SC}
  buffer_load_dwordx4 {vr(VB[0]+4,4)}, v2, s[20:23], s31 offen offset:512{SC}
  s_mov_b64 exec, -1
  s_waitcnt vmcnt(0)""")
    for j in range(8):
        A(f"  {MFMA} {vr(S[0],16)}, {vr(KB[0],4)}, {vr(Q+4*j,4)}, 0")
        A("  s_nop 7\n  s_nop 7")
        for r in range(16): A(f"  v_sub_f32 v{S[0]+r}, v{S[0]+r}, v{M+j}")
        for r in range(16): A(f"  v_exp_f32 v{S[0]+r}, v{S[0]+r}")
        A("  s_nop 0")
        for r in range(8): A(f"  v_cvt_pk_bf16_f32 v{P+r}, v{S[0]+2*r}, v{S[0]+2*r+1}")
        A("  s_nop 1")
        A(f"  {MFMA} {vr(O+16*j,16)}, {vr(VB[0],4)}, {vr(P,4)}, {vr(O+16*j,16)}")
        A(f"  {MFMA} {vr(O+16*j,16)}, {vr(VB[0]+4,4)}, {vr(P+4,4)}, {vr(O+16*j,16)}")
    A(f"""
  s_add_u32 s30, s30, 1024
  s_add_u32 s31, s31, 1024
  s_add_u32 s38, s38, 1
  s_cmp_lt_u32 s38, 16
  s_cbranch_scc1 {name}_fb2
  s_nop 7
  s_nop 7
{name}_adone:
  s_mul_i32 s40, s24, {PART_W}
  s_add_u32 s40, s40, {APART}
  v_add_u32 v4, s40, v1
  v_lshlrev_b32 v5, 3, v0
  v_add_u32 v5, s40, v5""")
    for j in range(8):
        A(f"  v_mov_b32 v{O+16*j+9}, v{M+j}")
        A(f"  ds_write_b128 v4, {vr(O+16*j,4)} offset:{j*TILE_P}")
        A(f"  ds_write_b128 v4, {vr(O+16*j+4,4)} offset:{j*TILE_P+1024}")
        A(f"  ds_write_b64 v5, {vr(O+16*j+8,2)} offset:{j*TILE_P+2048}")
    A(f"""
  s_waitcnt lgkmcnt(0)
  s_barrier""")
    merge_tile(A, 64, 16, "s24")
    A("  s_waitcnt vmcnt(0)\n  s_barrier")
    stamp_flush(A, 0, "s81", 8)
    A("  s_endpgm")

def gen_g(A, name):
    ACCB = 64; ACCA = 128; ACT = 192; WF = [16, 24]; D = 8
    vq = VmQ()
    srd(A, 20, 8, WS_TOTAL)
    srd(A, 12, 56, 1376*1024)
    A(f"""
  s_lshr_b32 s26, s25, 1
  s_lshl_b32 s26, s26, 3
  s_lshr_b32 s28, s2, 3
  s_and_b32 s28, s28, 7
  s_add_u32 s26, s26, s28                      ; tb
  s_and_b32 s28, s25, 1
  s_lshl_b32 s28, s28, 2
  s_lshr_b32 s30, s2, 6
  s_add_u32 s28, s28, s30                      ; nb
  s_mul_i32 s33, s24, 22
  s_cmp_eq_u32 s24, 3
  s_cselect_b32 s30, 1, 0
  s_sub_u32 s33, s33, s30
  s_cmp_ge_u32 s24, 2
  s_cselect_b32 s34, 21, 22                    ; n steps
  s_lshl_b32 s35, s33, 14
  s_lshl_b32 s36, s28, 7
  s_add_u32 s35, s35, s36                      ; W soffset
  s_mul_i32 s36, s26, 172                      ; 2*tb*86
  s_add_u32 s36, s36, s33
  s_lshl_b32 s36, s36, 10
  s_add_u32 s36, s36, {hex(WS_HF)}
  s_mov_b32 s37, {86*1024}
  s_lshl_b32 s38, s24, 14
  s_mov_b32 s42, 0x40000000
  v_lshrrev_b32 v2, 5, v0
  v_lshrrev_b32 v3, 1, v0
  v_and_b32 v3, 3, v3
  v_lshl_add_u32 v2, v2, 2, v3
  v_lshlrev_b32 v2, 10, v2
  v_lshrrev_b32 v3, 3, v0
  v_and_b32 v3, 3, v3
  v_lshl_add_u32 v2, v3, 5, v2
  v_and_b32 v3, 1, v0
  v_lshl_add_u32 v2, v3, 4, v2
  v_lshlrev_b32 v3, 4, v0                      ; v3 = lane*16
  v_lshrrev_b32 v4, 5, v0
  v_lshlrev_b32 v4, 9, v4                      ; hh*4*128
  v_lshrrev_b32 v5, 4, v0
  v_and_b32 v5, 1, v5
  v_lshl_add_u32 v4, v5, 7, v4
  v_and_b32 v5, 15, v0
  v_lshrrev_b32 v6, 2, v5
  v_lshl_add_u32 v4, v6, 5, v4
  v_and_b32 v6, 3, v5
  v_lshl_add_u32 v4, v6, 3, v4
  v_add_u32 v4, s38, v4
  s_waitcnt vmcnt(0)""")
    def issue_w(s, wso, masked):
        slot = s % D
        if masked:
            A(f"  s_cmp_gt_u32 s34, {s}\n  s_cselect_b32 s40, {wso}, s42"); w = "s40"
        else: w = wso
        A(f"  s_add_u32 m0, s38, {slot*2048}")
        A(f"  s_add_u32 s44, {w}, 8192")
        A(f"  buffer_load_dwordx4 v2, s[12:15], {w} offen lds")
        A(f"  s_add_u32 m0, s38, {slot*2048+1024}")
        A(f"  s_add_u32 {wso}, {wso}, 16384")
        A(f"  buffer_load_dwordx4 v2, s[12:15], s44 offen lds")
        vq.issue(("w", s)); vq.issue(("w", s))
    def issue_a(s, aso, masked):
        slot = s % D
        if masked:
            A(f"  s_cmp_gt_u32 s34, {s}\n  s_cselect_b32 s41, {aso}, s42"); a = "s41"
        else: a = aso
        A(f"  s_add_u32 s43, {a}, s37")
        A(f"  buffer_load_dwordx4 {vr(ACT+8*slot,4)}, v3, s[20:23], {a} offen{SC}")
        A(f"  buffer_load_dwordx4 {vr(ACT+8*slot+4,4)}, v3, s[20:23], s43 offen{SC}")
        A(f"  s_add_u32 {aso}, {aso}, 1024")
        vq.issue(("a", s)); vq.issue(("a", s))
    def trreads(s, buf):
        slot = s % D
        for t in range(2):
            A(f"  ds_read_b64_tr_b16 {vr(WF[buf]+4*t,2)}, v4 offset:{slot*2048 + t*256}")
            A(f"  ds_read_b64_tr_b16 {vr(WF[buf]+4*t+2,2)}, v4 offset:{slot*2048 + t*256 + 1024}")
    def run_steps(nstep, acc, wso, aso, masked, pre_w, pre_a):
        iw, ia = pre_w, pre_a
        vq.wait(A, {("w", 0)})
        trreads(0, 0)
        for s in range(nstep):
            slot = s % D; b = s & 1
            if s + 1 < nstep:
                vq.wait(A, {("w", s+1), ("a", s)})
                trreads(s + 1, b ^ 1)
                A("  s_waitcnt lgkmcnt(4)")
            else:
                vq.wait(A, {("a", s)})
                A("  s_waitcnt lgkmcnt(0)")
            for t in range(2):
                for u in range(2):
                    a = vr(acc+16*(2*t+u), 16)
                    A(f"  {MFMA} {a}, {vr(WF[b]+4*t,4)}, {vr(ACT+8*slot+4*u,4)}, {a}")
            if iw < nstep: issue_w(iw, wso, masked); iw += 1
            if ia < nstep: issue_a(ia, aso, masked); ia += 1
    for s in range(D): issue_w(s, "s35", True)
    for r in range(128): A(f"  v_mov_b32 v{ACCB+r}, 0")
    A(f"""
  s_barrier                                    ; E0
  s_cmp_eq_u32 s24, 0
  s_cbranch_scc1 {name}_g_hstore
  s_cmp_eq_u32 s24, 1
  s_cbranch_scc0 {name}_g_e2
  ; gw == 1 : post FQ[rb0][cg0], then wait until all 16 producers of this WG's head have posted
  s_lshl_b32 s30, s29, 6
  s_add_u32 s30, s30, {hex(WS_FQ)}
  v_mov_b32 v5, s30
  v_mov_b32 v6, s3
  s_mov_b64 exec, 1
  buffer_store_dword v6, v5, s[20:23], 0 offen sc1
  s_mov_b64 exec, -1
  s_lshr_b32 s30, s2, 3
  s_and_b32 s30, s30, 3
  s_lshl_b32 s31, s25, 2
  s_add_u32 s30, s30, s31                      ; head
  s_lshr_b32 s30, s30, 1
  v_and_b32 v5, 15, v0
  v_lshlrev_b32 v5, 4, v5
  v_add_u32 v5, s30, v5
  v_lshlrev_b32 v5, 6, v5
  v_add_u32 v5, {hex(WS_FQ)}, v5""")
    poll(A, name, 5, 6, "A")
    A(f"""
  s_branch {name}_g_e2
{name}_g_hstore:
  ; gw == 0 : h fragments LDS -> HBM.  s29 = rb*16 + cg
  s_lshr_b32 s30, s29, 4                       ; rb0
  s_and_b32 s31, s29, 15                       ; cg0
  s_mul_i32 s30, s30, {4*86}
  s_mul_i32 s31, s31, 6
  s_add_u32 s30, s30, s31
  s_lshl_b32 s30, s30, 10
  s_add_u32 s30, s30, {hex(WS_HF)}             ; (tile 4rb0, slab 6cg0)
  v_add_u32 v5, {HL}, v3""")
    for g in range(3):
        for k in range(8):
            A(f"  ds_read_b128 {vr(192+4*k,4)}, v5 offset:{(8*g+k)*1024}")
        for k in range(8):
            slot = 8*g + k; tl, sl_ = divmod(slot, 6)
            A(f"  s_add_u32 s40, s31, {sl_}\n  s_cmp_lt_u32 s40, 86\n  s_add_u32 s40, s30, {(tl*86+sl_)*1024}".replace("s_cmp_lt_u32 s40, 86\n  s_add_u32 s40, s30,", "s_cmp_lt_u32 s40, 86\n  s_cselect_b32 s41, s30, s42\n  s_add_u32 s40, s41,"))
            A(f"  s_waitcnt lgkmcnt({7-k})")
            A(f"  buffer_store_dwordx4 {vr(192+4*k,4)}, v3, s[20:23], s40 offen sc1")
        if g < 2: A("  s_nop 1")
    A(f"""
{name}_g_e2:
  s_barrier                                    ; E2
  s_cmp_lg_u32 s24, 0
  s_cbranch_scc1 {name}_g_nopost
  s_waitcnt vmcnt(0)
  s_lshl_b32 s30, s29, 6
  s_add_u32 s30, s30, {hex(WS_F1)}
  v_mov_b32 v5, s30
  v_mov_b32 v6, s3
  s_mov_b64 exec, 1
  buffer_store_dword v6, v5, s[20:23], 0 offen sc1
  s_mov_b64 exec, -1
{name}_g_nopost:
  ; poll F1[rb = tb>>1][0..15]
  s_lshr_b32 s30, s26, 1
  s_lshl_b32 s30, s30, 4
  v_and_b32 v5, 15, v0
  v_add_u32 v5, s30, v5
  v_lshlrev_b32 v5, 6, v5
  v_add_u32 v5, {hex(WS_F1)}, v5""")
    poll(A, name, 5, 6, "H")
    vq.drain()
    if not os.environ.get("CHST"): stamp(A, 3)
    A(f"""
  v_and_b32 v5, 31, v0
  v_lshlrev_b32 v5, 2, v5
  s_lshl_b32 s39, s26, 8
  s_add_u32 s39, s39, {hex(WS_G)}
  buffer_load_dword v8, v5, s[20:23], s39 offen sc1
  buffer_load_dword v9, v5, s[20:23], s39 offen offset:128 sc1""")
    vq.issue("g"); vq.issue("g")
    for s in range(D): issue_a(s, "s36", True)
    A(f"  s_setprio {GPRIO}")
    vq.q = [("w", s) for s in range(D)] + vq.q
    if os.environ.get("GSKIP"):
        A("  s_waitcnt vmcnt(0)"); vq.drain()
    else:
        run_steps(22, ACCB, "s35", "s36", True, D, D)
    if not os.environ.get("CHST"): stamp(A, 4)
    srd(A, 12, 58, 512*1024)
    A(f"""
  s_setprio 2
  s_lshl_b32 s35, s24, 17
  s_lshl_b32 s36, s28, 7
  s_add_u32 s35, s35, s36
  s_lshl_b32 s36, s26, 6                       ; (2tb)*32
  s_lshl_b32 s33, s24, 3
  s_add_u32 s36, s36, s33
  s_lshl_b32 s36, s36, 10
  s_add_u32 s36, s36, {hex(WS_OF)}
  s_mov_b32 s37, {32*1024}""")
    vq.drain()
    A("  s_waitcnt vmcnt(0)")
    for s in range(8): issue_w(s, "s35", False)
    A(f"""
  s_lshr_b32 s30, s2, 3
  s_and_b32 s30, s30, 3
  s_lshl_b32 s31, s25, 2
  s_mov_b32 s46, s28
  s_mov_b32 s47, s29
  s_add_u32 s28, s30, s31                      ; head
  s_lshr_b32 s29, s2, 5                        ; qb
  s_add_u32 s45, s24, 4
  v_mov_b32 v1, v3
  s_barrier                                    ; X""")
    merge_tile(A, 192, 32, "s45")
    A(f"""
  s_mov_b32 s28, s46
  s_mov_b32 s29, s47
  s_waitcnt vmcnt(0)
  s_barrier                                    ; Y
  s_cmp_lg_u32 s24, 0
  s_cbranch_scc1 {name}_g_nopost2
  s_lshr_b32 s30, s2, 3
  s_and_b32 s30, s30, 3
  s_lshl_b32 s31, s25, 2
  s_add_u32 s30, s30, s31                      ; head
  s_lshr_b32 s31, s2, 5                        ; qb
  s_lshl_b32 s31, s31, 5
  s_add_u32 s30, s30, s31
  s_lshl_b32 s30, s30, 6
  s_add_u32 s30, s30, {hex(WS_FO)}
  v_mov_b32 v5, s30
  v_mov_b32 v6, s3
  s_mov_b64 exec, 1
  buffer_store_dword v6, v5, s[20:23], 0 offen sc1
  s_mov_b64 exec, -1
{name}_g_nopost2:
  s_lshr_b32 s30, s26, 2
  s_lshl_b32 s30, s30, 5
  v_and_b32 v5, 31, v0
  v_add_u32 v5, s30, v5
  v_lshlrev_b32 v5, 6, v5
  v_add_u32 v5, {hex(WS_FO)}, v5""")
    if not os.environ.get("CHST"): stamp(A, 5)
    poll(A, name, 5, 6, "O")
    vq.drain()
    if not os.environ.get("CHST"): stamp(A, 6)
    for s in range(8): issue_a(s, "s36", False)
    vq.q = [("w", s) for s in range(8)] + vq.q
    run_steps(8, ACCA, "s35", "s36", False, 8, 8)
    A("  s_nop 7\n  s_nop 7")
    A("  v_sub_f32 v10, 1.0, v8\n  v_sub_f32 v11, 1.0, v9")
    for t in range(2):
        for u in range(2):
            for r in range(16):
                k = 16*(2*t+u)+r
                A(f"  v_mul_f32 v{ACCB+k}, v{10+u}, v{ACCB+k}")
                A(f"  v_fmac_f32 v{ACCB+k}, v{8+u}, v{ACCA+k}")
    A("  v_add_u32 v5, s38, v3")
    for tile in range(4):
        for q in range(4):
            A(f"  ds_write_b128 v5, {vr(ACCB+16*tile+4*q,4)} offset:{tile*4096+q*1024}")
    A(f"""
  s_waitcnt lgkmcnt(0)
  s_barrier
  s_lshl_b32 s40, s24, 12
  v_add_u32 v5, s40, v3""")
    for w in range(4):
        for q in range(4):
            A(f"  ds_read_b128 {vr(64+16*w+4*q,4)}, v5 offset:{w*16384+q*1024}")
    A("  s_waitcnt lgkmcnt(0)")
    for r in range(16):
        for w in range(1, 4): A(f"  v_add_f32 v{64+r}, v{64+r}, v{64+16*w+r}")
    for r in range(8): A(f"  v_cvt_pk_bf16_f32 v{16+r}, v{64+2*r}, v{65+2*r}")
    A(f"  s_load_dwordx2 s[60:61], s[0:1], {KA_OUT}\n  s_waitcnt lgkmcnt(0)")
    srd(A, 16, 60, 2048*1024)
    A(f"""
  s_and_b32 s41, s24, 1
  s_lshr_b32 s40, s24, 1
  s_lshl_b32 s42, s26, 6
  s_lshl_b32 s41, s41, 5
  s_add_u32 s42, s42, s41
  s_lshl_b32 s42, s42, 10
  s_lshl_b32 s43, s28, 7
  s_lshl_b32 s40, s40, 6
  s_add_u32 s43, s43, s40
  s_add_u32 s42, s42, s43
  v_and_b32 v5, 31, v0
  v_lshlrev_b32 v5, 10, v5
  v_lshrrev_b32 v6, 5, v0
  v_lshl_add_u32 v5, v6, 4, v5
  v_permlane32_swap_b32 v16, v18
  v_permlane32_swap_b32 v17, v19
  v_permlane32_swap_b32 v20, v22
  v_permlane32_swap_b32 v21, v23
  s_nop 1
  buffer_store_dwordx4 v[16:19], v5, s[16:19], s42 offen
  buffer_store_dwordx4 v[20:23], v5, s[16:19], s42 offen offset:32
  s_or_b32 s30, s2, s24
  s_cmp_lg_u32 s30, 0
  s_cbranch_scc1 {name}_g_noepoch
  v_mov_b32 v5, {WS_EPOCH}
  v_mov_b32 v6, s3
  s_mov_b64 exec, 1
  buffer_store_dword v6, v5, s[20:23], 0 offen
  s_mov_b64 exec, -1
{name}_g_noepoch:""")
    stamp_flush(A, 0, "s81", 8)
    A("  s_endpgm")

def gen_z(A, name=NAME):
    kernel_begin(A, name)
    stamp_init(A)
    A(f"""
  s_cmp_ge_u32 s2, 256
  s_cbranch_scc1 {name}_end
  s_load_dwordx4 s[4:7], s[0:1], {KA_AX}       ; A_x, wqkv
  s_load_dwordx4 s[52:55], s[0:1], {KA_WG}
  s_load_dwordx2 s[8:9], s[0:1], {KA_WS}
  s_load_dwordx2 s[10:11], s[0:1], {KA_GW}
  s_load_dwordx2 s[56:57], s[0:1], {KA_WD}
  s_load_dwordx2 s[58:59], s[0:1], {KA_WO}
  v_lshrrev_b32 v1, 6, v0
  v_and_b32 v0, 63, v0
  s_and_b32 s25, s2, 7
  s_lshr_b32 s27, s2, 3
  v_readfirstlane_b32 s24, v1
  s_and_b32 s26, s25, 3
  s_lshl_b32 s26, s26, 2
  s_and_b32 s27, s27, 3
  s_add_u32 s26, s26, s27                      ; rb = (j&3)*4 + ((c>>3)&3)
  s_lshr_b32 s27, s25, 2
  s_lshl_b32 s27, s27, 3
  s_lshr_b32 s28, s2, 5
  s_xor_b32 s28, s28, {int(os.environ.get("CGX", "0"))}
  s_add_u32 s27, s27, s28                      ; cg = (j>>2)*8 + (c>>5)
  s_lshl_b32 s29, s26, 4
  s_add_u32 s29, s29, s27                      ; rb*16 + cg
  s_waitcnt lgkmcnt(0)
  s_load_dword s3, s[8:9], {WS_EPOCH}""")
    if asmlib.STAMPS: A("  s_mov_b32 s81, s24")
    A(f"""
  s_cmp_lt_u32 s24, 4
  s_cbranch_scc1 {name}_compute""")
    srd(A, 20, 8, WS_TOTAL)
    gen_loader(A, name)
    A("  s_mul_i32 s3, s3, 1664525\n  s_add_u32 s3, s3, 1013904223")
    gen_g(A, name)
    A(f"{name}_compute:")
    gen_p12_compute(A, name)
    A("  s_mul_i32 s3, s3, 1664525\n  s_add_u32 s3, s3, 1013904223")
    gen_attn(A, name)
    A(f"{name}_end:\n  s_endpgm")
    return kernel_desc(name, 256, 96)
```

```python
from common import *
import asmlib, os
from asmlib import stamp, stamp_init, stamp_flush
NST1 = 4; STG1 = 32768; XB1 = 8192
NST2 = 3; XB = 16384; WB = 12288
STG2 = XB + 2*WB
MISC = 163584
LDS_Z = 163840
HL = 65536
LAG0 = int(os.environ.get("LAG0", "4"))
AHEAD = int(os.environ.get("AHEAD", "2"))

SC = " sc1"
APRIO = int(os.environ.get('APRIO', '1')); GPRIO = int(os.environ.get('GPRIO', '0'))
SPIN_MAX = 1 << 22
NAME = "gated_mix__mha_block__swiglu_ffn__prompt_kernel"

def poll(A, name, vaddr, vtmp, uid):
    A(f"""
  s_mov_b32 s87, 0
{name}_poll{uid}:
  buffer_load_dword v{vtmp}, v{vaddr}, s[20:23], 0 offen sc1
  s_waitcnt vmcnt(0)
  v_cmp_eq_u32 vcc, s3, v{vtmp}
  s_cmp_eq_u64 vcc, exec
  s_cbranch_scc1 {name}_poll{uid}_ok
  s_add_u32 s87, s87, 1
  s_cmp_lt_u32 s87, {SPIN_MAX}
  s_cbranch_scc0 {name}_poll{uid}_ok
  s_sleep 2
  s_branch {name}_poll{uid}
{name}_poll{uid}_ok:""")

NPRE = int(os.environ.get('NPRE', '1'))
TOUCHQ = int(os.environ.get('TOUCHQ', '99'))
def gen_loader(A, name):
    DX = 8; DQ = [9, 10, 11]; DG = [12, 13, 14]; DU = [56, 57, 58]
    vq = VmQ()
    A(f"""
  s_sub_u32 s24, s24, 4                        ; lw
  v_lshrrev_b32 v3, 3, v0                      ; l>>3
  v_lshrrev_b32 v4, 4, v0                      ; l>>4
  s_and_b32 s32, s24, 1
  s_lshl_b32 s32, s32, 2
  v_add_u32 v4, s32, v4                        ; f
  v_and_b32 v5, 7, v0
  v_xor_b32 v5, v5, v4                         ; c
  v_lshlrev_b32 v5, 4, v5
  v_lshl_add_u32 v{DX}, v3, 10, v5             ; voff_x
  s_lshl_b32 s35, s24, 13
  s_lshl_b32 s34, s63, 16
  s_add_u32 s33, s34, s35
  s_lshl_b32 s34, s26, 17
  s_add_u32 s34, s34, s35
  s_lshl_b32 s36, s24, 10
  s_and_b32 s28, s63, {int(os.environ.get('ROT1', '7'))}
  s_and_b32 s47, s26, {int(os.environ.get('ROT2', '7'))}
  s_mov_b32 s61, s47
  s_mul_i32 s35, s24, {16*3072}
  s_mul_i32 s48, s24, {16*2752}
  s_mul_i32 s37, s24, 6144
  s_add_u32 s37, s37, {XB1}
  s_mul_i32 s60, s24, 3072
  s_add_u32 s60, s60, {XB}
  s_waitcnt lgkmcnt(0)""")
    srd(A, 12, 4, 2048*1024)
    def stage(q): return (q % NST1) * STG1 if q < 8 else ((q - 8) % NST2) * STG2
    def chunk_regs(q):
        A(f"  s_add_u32 s49, s{28 if q < 8 else 61}, {q & 7}\n  s_and_b32 s49, s49, 7")
        A(f"  s_mul_i32 s50, s49, {64*(3072 if q < 8 else 2752)}\n  s_lshl_b32 s49, s49, 7")
        A(f"  s_add_u32 s49, s49, s{33 if q < 8 else 34}\n  s_add_u32 s50, s50, s{35 if q < 8 else 48}")
        if q < 8: A(f"  s_add_u32 s51, s50, {8*3072}")
    def dma_x(q, n):
        if n == 0: chunk_regs(q)
        A(f"  s_add_u32 m0, s36, {stage(q) + n*4096}")
        A(f"  s_add_u32 s38, s49, {n*32768}")
        A(f"  buffer_load_dwordx4 v{DX}, s[12:15], s38 offen lds")
        vq.issue(("c", q))
    for n in range(2): dma_x(0, n)
    srd(A, 16, 6, 512*3072)
    A(f"""
  s_lshl_b32 s32, s62, 7
  s_mul_i32 s39, s27, 192
  v_lshlrev_b32 v4, 4, v0                      ; lane*16""")
    for p in range(3):
        A(f"""
  v_add_u32 v5, {1024*p}, v4                   ; o
  v_lshrrev_b32 v6, 7, v5                      ; u = o/128
  v_mul_u32_u24 v7, 171, v6
  v_lshrrev_b32 v7, 9, v7                      ; row = u/3
  v_mul_u32_u24 v18, 3, v7
  v_sub_u32 v6, v6, v18                        ; seg
  v_and_b32 v5, 127, v5                        ; within
  v_lshrrev_b32 v18, 1, v7
  v_and_b32 v18, 1, v18
  v_lshlrev_b32 v18, 6, v18
  v_xor_b32 v5, v5, v18
  v_mul_u32_u24 v18, 3072, v7
  v_lshl_add_u32 v18, v6, 10, v18
  v_add3_u32 v{DQ[p]}, v18, v5, s32""")
    def dma_list(q):
        if q < 8:
            L = [ (lambda n=n: dma_x(q, n)) for n in range(2) ]
            for p in range(6):
                def f(p=p):
                    A(f"  s_add_u32 m0, s37, {stage(q) + p*1024}")
                    A(f"  s_nop 0")
                    A(f"  buffer_load_dwordx4 v{DQ[p%3]}, s[16:19], s{50 if p < 3 else 51} offen lds")
                    vq.issue(("c", q))
                L.append(f)
            return L
        L = [ (lambda n=n: dma_x(q, n)) for n in range(4) ]
        for reg, (srdr, pats) in enumerate(((40, DG), (44, DU))):
            for p in range(3):
                def f(reg=reg, srdr=srdr, pats=pats, p=p):
                    A(f"  s_add_u32 m0, s60, {stage(q) + reg*WB + p*1024}")
                    A(f"  s_nop 0")
                    A(f"  buffer_load_dwordx4 v{pats[p]}, s[{srdr}:{srdr+3}], s50 offen lds")
                    vq.issue(("c", q))
                L.append(f)
        return L
    stream = []; ends = []
    for q in range(16):
        stream += dma_list(q); ends.append(len(stream))
    pos = [2]
    def issue_upto(n):
        while pos[0] < n:
            stream[pos[0]](); pos[0] += 1
    issue_upto(ends[NPRE])
    srd(A, 40, 52, 512*2752)
    srd(A, 44, 54, 512*2752)
    for p in range(3):
        A(f"""
  v_add_u32 v5, {1024*p}, v4
  v_lshrrev_b32 v6, 6, v5
  v_mul_u32_u24 v7, 171, v6
  v_lshrrev_b32 v7, 9, v7                      ; row
  v_mul_u32_u24 v18, 3, v7
  v_sub_u32 v6, v6, v18                        ; seg
  v_and_b32 v5, 63, v5
  v_lshl_add_u32 v19, v6, 6, v5
  v_mul_u32_u24 v18, 2752, v7""")
        for dst, x in ((DG[p], 0), (DU[p], 32)):
            A(f"""
  v_xor_b32 v6, {x}, v19
  v_add_u32 v6, s39, v6                        ; + cg*192
  v_add_u32 v{dst}, v18, v6
  v_cmp_le_u32 vcc, 2752, v6
  v_add_u32 v6, 0x40000000, v{dst}
  v_cndmask_b32 v{dst}, v{dst}, v6, vcc""")
    A(f"""
  s_lshl_b32 s30, s26, 7
  s_lshl_b32 s31, s27, 3
  s_add_u32 s30, s30, s31
  s_lshl_b32 s31, s24, 1
  s_add_u32 s30, s30, s31
  s_lshl_b32 s31, s30, 10
  v_lshlrev_b32 v2, 4, v0
  buffer_load_dwordx4 v[20:23], v2, s[12:15], s31 offen
  buffer_load_dwordx4 v[24:27], v2, s[12:15], s31 offen offset:1024
  global_load_dwordx4 v[28:31], v2, s[10:11]""")
    for _ in range(3): vq.issue("gin")
    A("  s_mov_b32 s88, s30")
    ACCF = 64
    F2 = [[16, 20, 24, 28, 32], [36, 40, 44, 48, 52]]
    XA2 = [160, 161, 162, 163]; WA2 = [164, 165, 166]; VC = 167; V1 = 168; VT = 169
    A(f"""
  s_lshr_b32 s30, s24, 1                       ; i
  s_and_b32 s31, s24, 1                        ; j
  v_and_b32 v48, 31, v0                        ; token
  v_lshrrev_b32 v49, 5, v0                     ; hh
  v_lshrrev_b32 v50, 1, v48
  v_and_b32 v50, 7, v50                        ; f
  s_lshl_b32 s32, s30, 13
  v_lshlrev_b32 v51, 7, v48""")
    for s_ in range(4):
        A(f"  v_add_u32 v52, {2*s_}, v49\n  v_xor_b32 v52, v52, v50\n  v_lshl_add_u32 v52, v52, 4, v51\n  v_add_u32 v{XA2[s_]}, s32, v52")
    A(f"""
  v_and_b32 v48, 15, v0                        ; i16
  v_lshrrev_b32 v50, 4, v0
  v_and_b32 v50, 1, v50                        ; gu
  v_lshrrev_b32 v52, 2, v48
  v_lshl_add_u32 v52, v49, 3, v52
  v_mul_u32_u24 v51, 192, v52
  v_and_b32 v52, 3, v48
  v_lshl_add_u32 v51, v52, 3, v51
  v_mul_u32_u24 v54, {WB}, v50
  v_add_u32 v54, v54, v51
  v_add_u32 v54, {XB}, v54
  s_mul_i32 s32, s31, 3                        ; 3j""")
    for t in range(3):
        A(f"  s_add_u32 s39, s32, {t}\n  v_xor_b32 v55, s39, v50\n  v_lshl_add_u32 v{WA2[t]}, v55, 5, v54")
    A(f"  v_mov_b32 v{VC}, {MISC}\n  v_mov_b32 v{V1}, 1")
    for r in range(96): A(f"  v_mov_b32 v{ACCF+r}, 0")
    stamp(A, 1)
    for q in range(8):
        if q == 0: tgt = ends[NPRE]
        else:
            hi = min(q + AHEAD, 7)
            if q == 7 and not os.environ.get("HOLD"): hi = 8
            tgt = ends[hi]
        issue_upto(tgt)
        if os.environ.get("CHST") == "1" and q in (0, 2, 4, 6): stamp(A, 3 + q//2)
        vq.wait(A, {("c", q)})
        if os.environ.get("CHST") == "2" and q in (0, 2, 4, 6): stamp(A, 3 + q//2)
        A("  s_barrier")
        if q == TOUCHQ:
            A(f"""
  v_and_b32 v59, 31, v0
  v_lshrrev_b32 v60, 5, v0
  v_mul_u32_u24 v59, 2752, v59
  v_lshl_add_u32 v59, v60, 7, v59
  s_and_b32 s82, s26, 3
  s_lshl_b32 s82, s82, 2
  s_add_u32 s82, s82, s24
  s_mul_i32 s82, s82, {32*2752}
  s_mul_i32 s83, s27, 192
  s_add_u32 s82, s82, s83
  buffer_load_dword v60, v59, s[40:43], s82 offen
  buffer_load_dword v61, v59, s[44:47], s82 offen""")
            vq.issue("touch"); vq.issue("touch")
        if q == 1:
            A("""
  v_lshlrev_b32 v32, 16, v28
  v_and_b32 v33, 0xffff0000, v28
  v_lshlrev_b32 v34, 16, v29
  v_and_b32 v35, 0xffff0000, v29
  v_lshlrev_b32 v36, 16, v30
  v_and_b32 v37, 0xffff0000, v30
  v_lshlrev_b32 v38, 16, v31
  v_and_b32 v39, 0xffff0000, v31""")
            for t, base, acc in ((0, 20, 40), (1, 24, 41)):
                for j in range(4):
                    A(f"  v_lshlrev_b32 v42, 16, v{base+j}")
                    A(f"  v_and_b32 v43, 0xffff0000, v{base+j}")
                    if j == 0: A(f"  v_mul_f32 v{acc}, v42, v32")
                    else: A(f"  v_fmac_f32 v{acc}, v42, v{32+2*j}")
                    A(f"  v_fmac_f32 v{acc}, v43, v{33+2*j}")
            for ctl in ("row_shr:1", "row_shr:2", "row_shr:4", "row_shr:8"):
                A("  s_nop 1")
                A(f"  v_add_f32_dpp v40, v40, v40 {ctl} row_mask:0xf bank_mask:0xf bound_ctrl:0")
                A(f"  v_add_f32_dpp v41, v41, v41 {ctl} row_mask:0xf bank_mask:0xf bound_ctrl:0")
            A(f"""  s_nop 1
  v_readlane_b32 s72, v40, 15
  v_readlane_b32 s73, v40, 31
  v_readlane_b32 s74, v40, 47
  v_readlane_b32 s75, v40, 63
  v_readlane_b32 s39, v41, 15
  v_readlane_b32 s31, v41, 31
  v_readlane_b32 s32, v41, 47
  v_readlane_b32 s76, v41, 63
  s_nop 1
  v_mov_b32 v44, s72
  v_add_f32 v44, s73, v44
  v_add_f32 v44, s74, v44
  v_add_f32 v44, s75, v44
  v_mov_b32 v45, s39
  v_add_f32 v45, s31, v45
  v_add_f32 v45, s32, v45
  v_add_f32 v45, s76, v45
  v_cmp_eq_u32 vcc, 1, v0
  s_nop 1
  v_cndmask_b32 v44, v44, v45, vcc             ; lane1 -> token1, others token0
  v_mul_f32 v44, 0xbfb8aa3b, v44               ; -log2e * z
  v_exp_f32 v44, v44
  s_nop 0
  v_add_f32 v44, 1.0, v44
  v_rcp_f32 v44, v44
  s_lshl_b32 s72, s88, 2
  v_lshlrev_b32 v45, 2, v0
  v_add_u32 v45, s72, v45
  v_add_u32 v45, {hex(WS_G)}, v45
  v_cmp_gt_u32 vcc, 2, v0
  s_and_saveexec_b64 s[72:73], vcc
  buffer_store_dword v44, v45, s[20:23], 0 offen{SC}
  s_mov_b64 exec, s[72:73]
  s_mul_i32 s3, s3, 1664525
  s_add_u32 s3, s3, 1013904223                 ; hand-off tag of this launch""".replace("s72", "s82").replace("s73", "s83").replace("s74", "s84").replace("s75", "s85").replace("s76", "s86").replace("s[72:73]", "s[82:83]"))
            vq.issue("gout")
    A("  s_barrier")
    stamp(A, 2)
    if os.environ.get("HOLD"):
        A(f"""
{name}_g_hold:
  ds_read_b32 v{VT}, v{VC} offset:8
  s_waitcnt lgkmcnt(0)
  v_readfirstlane_b32 s39, v{VT}
  s_nop 0
  s_cmp_lg_u32 s39, 0
  s_cbranch_scc1 {name}_g_hold_ok
  s_sleep 2
  s_branch {name}_g_hold
{name}_g_hold_ok:""")
    def rd2(buf, s_):
        L = [f"  ds_read_b128 {vr(F2[buf][0],4)}, v{XA2[s_]}", f"  ds_read_b128 {vr(F2[buf][1],4)}, v{XA2[s_]} offset:4096"]
        for t in range(3):
            L.append(f"  ds_read_b64_tr_b16 {vr(F2[buf][2+t],2)}, v{WA2[t]} offset:{s_*3072}")
            L.append(f"  ds_read_b64_tr_b16 {vr(F2[buf][2+t]+2,2)}, v{WA2[t]} offset:{s_*3072 + 768}")
        return L
    def mf2(buf):
        L = []
        if os.environ.get("FNOMFMA"): return L
        for t in range(3):
            for u in range(2):
                a_ = vr(ACCF + 16*(2*t+u), 16)
                L.append(f"  {MFMA} {a_}, {vr(F2[buf][2+t],4)}, {vr(F2[buf][u],4)}, {a_}")
        return L
    def interleave(mf, rd, per):
        k = 0
        for m in mf:
            A(m)
            for _ in range(per):
                if k < len(rd): A(rd[k]); k += 1
        while k < len(rd): A(rd[k]); k += 1
    nsync = [0]
    def gsync(deferred=None):
        nsync[0] += 1
        A(f"  s_mov_b64 exec, 1\n  ds_add_u32 v{VC}, v{V1}\n  s_mov_b64 exec, -1")
        if deferred: deferred()
        L = A.newlabel(name + "_gs")
        A(f"""{L}:
  ds_read_b32 v{VT}, v{VC}
  s_waitcnt lgkmcnt(0)
  v_readfirstlane_b32 s39, v{VT}
  s_nop 0
  s_cmp_ge_u32 s39, {4*nsync[0]}
  s_cbranch_scc1 {L}_ok
  s_sleep 1
  s_branch {L}
{L}_ok:""")
    def deferred():
        A(f"  s_setprio {GPRIO}")
        for m in mf2(1): A(m)
        A("  s_setprio 2")
    for q in range(8, 16):
        A("  s_setprio 2")
        if q > 8:
            A("  s_waitcnt lgkmcnt(0)")
            d = STG2 if ((q - 8) % NST2) != 0 else -(NST2-1)*STG2
            for r in XA2 + WA2:
                A(f"  v_add_u32 v{r}, {d}, v{r}" if d > 0 else f"  v_subrev_u32 v{r}, {-d}, v{r}")
        if q == 8: issue_upto(ends[8])
        vq.wait(A, {("c", q)})
        if os.environ.get("CHST") == "3" and q in (9, 11, 13, 15): stamp(A, 3 + (q-9)//2)
        gsync(deferred if q > 8 else None)
        if os.environ.get("CHST") == "4" and q in (9, 11, 13, 15): stamp(A, 3 + (q-9)//2)
        if q == 8: issue_upto(ends[9])
        tgt = ends[min(q + 2, 15)]
        for l in rd2(0, 0): A(l)
        A(f"  s_setprio {GPRIO}")
        for s_ in range(3):
            b_ = s_ & 1
            A("  s_waitcnt lgkmcnt(0)")
            mf = mf2(b_); rd = rd2(b_ ^ 1, s_ + 1); k = 0
            for i_, m in enumerate(mf):
                A(m)
                for _ in range(2):
                    if k < len(rd): A(rd[k]); k += 1
                if i_ in (0, 2, 4, 5) and pos[0] < tgt: issue_upto(pos[0] + 1)
            while k < len(rd): A(rd[k]); k += 1
        issue_upto(tgt)
    A("  s_waitcnt lgkmcnt(0)")
    for m in mf2(1): A(m)
    if not os.environ.get("CHST"): stamp(A, 3)
    T = 170
    A(f"""
  s_setprio 2
  v_mov_b32 v178, 0xbfb8aa3b
  v_mov_b32 v179, 0xbfb8aa3b
  v_mov_b32 v188, 1.0
  v_mov_b32 v189, 1.0
  v_lshlrev_b32 v2, 4, v0
  s_lshl_b32 s51, s26, 2
  s_lshr_b32 s30, s24, 1
  s_lshl_b32 s30, s30, 1
  s_add_u32 s51, s51, s30
  s_mul_i32 s51, s51, 86
  s_mul_i32 s49, s27, 6
  s_and_b32 s31, s24, 1
  s_mul_i32 s31, s31, 3
  s_add_u32 s49, s49, s31
  s_add_u32 s51, s51, s49
  s_lshl_b32 s51, s51, 10
  s_add_u32 s51, s51, {hex(WS_HF)}
  s_mov_b32 s38, 0x40000000
  s_nop 3""")
    for t in range(3):
        A(f"  s_add_u32 s39, s49, {t}\n  s_cmp_lt_u32 s39, 86\n  s_cselect_b32 s39, s51, s38")
        for u in range(2 if not os.environ.get("FNOSILU") else 0):
            a_ = ACCF + 16*(2*t+u)
            for r in range(0, 8, 2): A(f"  v_pk_mul_f32 {vr(T+r,2)}, {vr(a_+r,2)}, v[178:179]")
            for r in range(8): A(f"  v_exp_f32 v{T+r}, v{T+r}")
            for r in range(0, 8, 2): A(f"  v_pk_mul_f32 {vr(a_+8+r,2)}, {vr(a_+r,2)}, {vr(a_+8+r,2)}")
            for r in range(0, 8, 2): A(f"  v_pk_add_f32 {vr(T+r,2)}, {vr(T+r,2)}, v[188:189]")
            for r in range(8): A(f"  v_rcp_f32 v{T+r}, v{T+r}")
            A(f"  s_add_u32 s31, s39, {t*1024 + u*86*1024}")
            for r in range(0, 8, 2): A(f"  v_pk_mul_f32 {vr(T+r,2)}, {vr(a_+8+r,2)}, {vr(T+r,2)}")
            d = 180 + 4*((2*t+u) % 2)
            for r in range(4): A(f"  v_cvt_pk_bf16_f32 v{d+r}, v{T+2*r}, v{T+2*r+1}")
            A(f"  buffer_store_dwordx4 {vr(d,4)}, v2, s[20:23], s31 offen{SC}")
    A(f"  s_waitcnt vmcnt(0)")
    gsync()
    A(f"""
  s_cmp_lg_u32 s24, 0
  s_cbranch_scc1 {name}_g_nopost
  s_lshl_b32 s30, s29, 6
  s_add_u32 s30, s30, {hex(WS_F1)}
  v_mov_b32 v5, s30
  v_mov_b32 v6, s3
  s_mov_b64 exec, 1
  buffer_store_dword v6, v5, s[20:23], 0 offen sc1
  s_mov_b64 exec, -1
{name}_g_nopost:""")

QACC, KACC, VACC = 160, 176, 192
def gen_p1(A, name):
    XA1 = [2, 3, 4, 5]; WQ = 6
    F1 = [[[208, 212, 216, 220], [224, 228, 232, 236]], [[16, 20, 24, 28], [32, 36, 40, 44]]]
    A(f"""
  s_cmp_lg_u32 s24, 0
  s_cbranch_scc1 {name}_nozero
  v_mov_b32 v48, {MISC}
  v_mov_b32 v50, 0
  v_mov_b32 v51, 0
  v_mov_b32 v52, 0
  v_mov_b32 v53, 0
  ds_write_b128 v48, v[50:53]
  s_waitcnt lgkmcnt(0)
{name}_nozero:
  s_and_b32 s30, s24, 1
  s_lshr_b32 s31, s24, 1
  v_and_b32 v48, 31, v0                        ; token
  v_lshrrev_b32 v49, 5, v0                     ; hh
  v_lshrrev_b32 v50, 1, v48
  v_and_b32 v50, 7, v50                        ; f
  s_lshl_b32 s34, s30, 12
  v_lshlrev_b32 v51, 7, v48""")
    for s in range(4):
        A(f"  v_add_u32 v52, {2*s}, v49\n  v_xor_b32 v52, v52, v50\n  v_lshl_add_u32 v52, v52, 4, v51\n  v_add_u32 v{XA1[s]}, s34, v52")
    A(f"""
  v_and_b32 v48, 15, v0                        ; i16
  v_lshrrev_b32 v50, 4, v0
  v_and_b32 v50, 1, v50                        ; u
  v_lshrrev_b32 v52, 2, v48                    ; i>>2
  v_lshrrev_b32 v53, 1, v52
  v_and_b32 v53, 1, v53                        ; swz
  v_xor_b32 v53, s31, v53
  v_lshl_add_u32 v52, v49, 3, v52
  v_mul_u32_u24 v51, 384, v52
  v_lshl_add_u32 v51, v53, 6, v51
  v_lshl_add_u32 v51, v50, 5, v51
  v_and_b32 v52, 3, v48
  v_lshl_add_u32 v51, v52, 3, v51
  v_add_u32 v{WQ}, {XB1}, v51""")
    for r in range(48): A(f"  v_mov_b32 v{QACC+r}, 0")
    def rd1(buf, sup):
        L = []
        for h in range(2):
            s = 2*sup + h; F = F1[buf][h]
            L.append(f"  ds_read_b128 {vr(F[0],4)}, v{XA1[s]}")
            for t in range(3):
                L.append(f"  ds_read_b64_tr_b16 {vr(F[1+t],2)}, v{WQ} offset:{s*6144 + t*128}")
                L.append(f"  ds_read_b64_tr_b16 {vr(F[1+t]+2,2)}, v{WQ} offset:{s*6144 + t*128 + 1536}")
        return L
    def mf1(buf):
        L = []
        for h in range(2):
            F = F1[buf][h]; x = vr(F[0],4)
            L += [f"  {MFMA} {vr(QACC,16)}, {vr(F[1],4)}, {x}, {vr(QACC,16)}",
                  f"  {MFMA} {vr(KACC,16)}, {vr(F[2],4)}, {x}, {vr(KACC,16)}",
                  f"  {MFMA} {vr(VACC,16)}, {x}, {vr(F[3],4)}, {vr(VACC,16)}"]
        return L
    def interleave(mf, rd, per):
        k = 0
        for m in mf:
            A(m)
            for _ in range(per):
                if k < len(rd): A(rd[k]); k += 1
        while k < len(rd): A(rd[k]); k += 1
    def advance(q, regs):
        d = STG1 if ((q+1) % NST1) != 0 else -(NST1-1)*STG1
        for r in regs:
            if d > 0: A(f"  v_add_u32 v{r}, {d}, v{r}")
            else: A(f"  v_subrev_u32 v{r}, {-d}, v{r}")
    stamp(A, 1)
    A("  s_barrier")
    for l in rd1(0, 0): A(l)
    for q in range(8):
        for sup in range(2):
            A("  s_waitcnt lgkmcnt(0)")
            if sup == 0: interleave(mf1(0), rd1(1, 1), 3)
            elif q < 7:
                advance(q, XA1 + [WQ])
                if os.environ.get("CHST") and q in (0, 2, 4, 6): stamp(A, 3 + q//2)
                A("  s_barrier")
                interleave(mf1(1), rd1(0, 0), 3)
            else:
                A("  s_barrier                                    ; B8")
                interleave(mf1(1), [], 3)
    stamp(A, 2)
    srd(A, 44, 8, WS_TOTAL)
    A(f"""
  v_lshlrev_b32 v56, 4, v0                     ; lane*16
  s_lshl_b32 s36, s63, 1
  s_add_u32 s37, s36, s30
  v_and_b32 v57, 15, v0
  v_lshlrev_b32 v57, 4, v57
  v_lshrrev_b32 v58, 5, v0
  v_lshl_add_u32 v57, v58, 8, v57
  v_lshrrev_b32 v58, 4, v0
  v_and_b32 v58, 1, v58
  v_lshl_add_u32 v57, v58, 16, v57             ; u*65536 + hh*256 + d*16
  s_lshl_b32 s39, s62, 1
  s_add_u32 s39, s39, s31
  s_lshl_b32 s39, s39, 7                       ; head*64
  s_add_u32 s40, s39, s37
  s_lshl_b32 s40, s40, 10
  s_mov_b32 s55, {hex(f2u(QSCALE))}
  s_add_u32 s42, s40, {hex(WS_KF)}
  s_add_u32 s43, s42, 65536""")
    for r in range(8): A(f"  v_cvt_pk_bf16_f32 v{208+r}, v{KACC+2*r}, v{KACC+2*r+1}")
    A(f"  buffer_store_dwordx4 v[208:211], v56, s[44:47], s42 offen{SC}\n  buffer_store_dwordx4 v[212:215], v56, s[44:47], s43 offen{SC}")
    for r in range(8): A(f"  v_cvt_pk_bf16_f32 v{216+r}, v{VACC+2*r}, v{VACC+2*r+1}")
    A(f"  s_add_u32 s42, s40, {hex(WS_VF)}")
    A(f"  buffer_store_dwordx4 v[216:219], v57, s[44:47], s42 offen{SC}\n  buffer_store_dwordx4 v[220:223], v57, s[44:47], s42 offen offset:512{SC}")
    for r in range(16): A(f"  v_mul_f32 v{QACC+r}, s55, v{QACC+r}")
    for r in range(8): A(f"  v_cvt_pk_bf16_f32 v{224+r}, v{QACC+2*r}, v{QACC+2*r+1}")
    A(f"  s_add_u32 s42, s40, {hex(WS_QF)}\n  s_add_u32 s43, s42, 65536")
    A(f"  buffer_store_dwordx4 v[224:227], v56, s[44:47], s42 offen{SC}\n  buffer_store_dwordx4 v[228:231], v56, s[44:47], s43 offen{SC}")

Q = 32; O = 64; S = [192, 208]; P = 224; KB = [16, 20, 8, 12]; VB = [24, 232, 240, 248]; M = 240; NB = 4
APART = 65536; TILE_P = 2560; PART_W = 8*TILE_P
ORDER = "e0 p7 e1 e2 e3 Bp L1 c0 e4 e5 c1 e6 e7 c2 e8 W S L2 e9 c3 e10 e11 c4 e12 e13 A c5 e14 e15 c6"
def attn_step(A, kb, jq):
    b = jq & 1; So, Sn = S[b], S[b ^ 1]
    pj = (jq - 1) % 8; pkb = kb if jq > 0 else (kb - 1) % NB
    nj = (jq + 1) % 8; nkb = kb if jq < 7 else (kb + 1) % NB
    fsl = (kb - 1) % NB
    for tok in ORDER.split():
        if tok[0] == 'e':
            i = int(tok[1:]); A(f"  v_exp_f32 v{So+i}, v{So+i}")
        elif tok[0] == 'c':
            i = int(tok[1:]); A(f"  v_cvt_pk_bf16_f32 v{P+i}, v{So+2*i}, v{So+2*i+1}")
        elif tok[0] == 'p':
            i = int(tok[1:]); A(f"  v_cvt_pk_bf16_f32 v{P+i}, v{Sn+2*i}, v{Sn+2*i+1}")
        elif tok == 'S':
            A(f"  {MFMA} {vr(Sn,16)}, {vr(KB[nkb],4)}, {vr(Q+4*nj,4)}, 0")
        elif tok == 'A':
            A(f"  {MFMA} {vr(O+16*jq,16)}, {vr(VB[kb],4)}, {vr(P,4)}, {vr(O+16*jq,16)}")
        elif tok == 'Bp':
            A(f"  {MFMA} {vr(O+16*pj,16)}, {vr(VB[pkb]+4,4)}, {vr(P+4,4)}, {vr(O+16*pj,16)}")
        elif tok == 'L1':
            if jq == 0:
                A(f"  buffer_load_dwordx4 {vr(KB[fsl],4)}, v1, s[20:23], s30 offen{SC}")
            elif jq == 1:
                A(f"  s_add_u32 s30, s30, 1024")
            elif jq == 2 and kb == 0:
                A(f"  s_cmp_eq_u32 s38, {16//NB - 1}")
                A(f"  s_cselect_b32 s30, s39, s30")
        elif tok == 'L2':
            if jq == 0:
                A(f"  s_mov_b64 exec, s[36:37]")
                A(f"  buffer_load_dwordx4 {vr(VB[fsl],4)}, v2, s[20:23], s31 offen{SC}")
                A(f"  buffer_load_dwordx4 {vr(VB[fsl]+4,4)}, v2, s[20:23], s31 offen offset:512{SC}")
                A(f"  s_mov_b64 exec, -1")
            elif jq == 1:
                A(f"  s_add_u32 s31, s31, 1024")
            elif jq == 2 and kb == 0:
                A(f"  s_cmp_eq_u32 s38, {16//NB - 1}")
                A(f"  s_cselect_b32 s31, s39, s31")
        elif tok == 'W':
            if jq == 7: A(f"  s_waitcnt vmcnt({3*(NB-2)})")
        else: raise Exception(tok)
def merge_tile(A, R, T, tile_s, unit_imm=None):
    A(f"""
  s_mul_i32 s40, {tile_s}, {TILE_P}
  s_add_u32 s40, s40, {APART}
  v_add_u32 v{T}, s40, v1
  v_lshrrev_b32 v{T+1}, 1, v1
  v_add_u32 v{T+1}, s40, v{T+1}
  v_add_u32 v{T+2}, {2*PART_W}, v{T}
  v_add_u32 v{T+3}, {2*PART_W}, v{T+1}""")
    for w in range(4):
        a4, a5 = (T, T+1) if w < 2 else (T+2, T+3)
        o = (w % 2)*PART_W
        A(f"  ds_read_b64 {vr(R+10*w+8,2)}, v{a5} offset:{o+2048}")
    for w in range(4):
        a4, a5 = (T, T+1) if w < 2 else (T+2, T+3)
        o = (w % 2)*PART_W
        A(f"  ds_read_b128 {vr(R+10*w,4)}, v{a4} offset:{o}")
        A(f"  ds_read_b128 {vr(R+10*w+4,4)}, v{a4} offset:{o+1024}")
    A(f"""
  s_lshl_b32 s41, s29, 3
  s_add_u32 s41, s41, {tile_s}
  s_lshl_b32 s41, s41, 5
  s_add_u32 s41, s41, s28                      ; *32 + head
  s_lshl_b32 s41, s41, 10
  s_add_u32 s41, s41, {hex(WS_OF)}
  s_waitcnt lgkmcnt(8)""")
    A(f"  v_max3_f32 v{T}, v{R+9}, v{R+19}, v{R+29}")
    A(f"  v_max_f32 v{T}, v{T}, v{R+39}")
    for w in range(4): A(f"  v_sub_f32 v{T+1+w}, v{R+10*w+9}, v{T}")
    for w in range(4): A(f"  v_exp_f32 v{T+1+w}, v{T+1+w}")
    A("  s_nop 0")
    A(f"  v_mul_f32 v{T+5}, v{T+1}, v{R+8}")
    for w in range(1, 4): A(f"  v_fmac_f32 v{T+5}, v{T+1+w}, v{R+10*w+8}")
    A(f"  v_rcp_f32 v{T+5}, v{T+5}")
    A("  s_nop 0")
    for w in range(4): A(f"  v_mul_f32 v{T+1+w}, v{T+5}, v{T+1+w}")
    A("  s_waitcnt lgkmcnt(0)")
    for r in range(8):
        A(f"  v_mul_f32 v{T+6+r}, v{T+1}, v{R+r}")
        for w in range(1, 4): A(f"  v_fmac_f32 v{T+6+r}, v{T+1+w}, v{R+10*w+r}")
    for r in range(4): A(f"  v_cvt_pk_bf16_f32 v{R+r}, v{T+6+2*r}, v{T+7+2*r}")
    A(f"  buffer_store_dwordx4 {vr(R,4)}, v1, s[20:23], s41 offen{SC}")
def gen_attn(A, name):
    srd(A, 20, 8, WS_TOTAL)
    A(f"""
  s_mul_i32 s3, s3, 1664525
  s_add_u32 s3, s3, 1013904223
  s_lshr_b32 s28, s2, 3
  s_and_b32 s28, s28, 3
  s_lshl_b32 s29, s25, 2
  s_add_u32 s28, s28, s29                      ; head
  s_lshr_b32 s29, s2, 5                        ; qb
  v_lshlrev_b32 v1, 4, v0                      ; lane*16
  v_and_b32 v2, 15, v0
  v_lshlrev_b32 v2, 4, v2
  v_lshrrev_b32 v3, 5, v0
  v_lshl_add_u32 v2, v3, 8, v2                 ; hh*256 + d*16
  s_mov_b32 s36, 0x0000ffff
  s_mov_b32 s37, 0x0000ffff
  s_mov_b32 s39, 0x40000000
  s_lshl_b32 s33, s28, 16                      ; head*64*1024
  s_lshl_b32 s34, s29, 13                      ; qb*8*1024
  s_add_u32 s34, s34, s33
  s_add_u32 s34, s34, {hex(WS_QF)}
  s_lshl_b32 s35, s24, 14
  s_add_u32 s35, s35, s33
  s_add_u32 s32, s35, {hex(WS_KF)}
  s_add_u32 s35, s35, {hex(WS_VF)}             ; V base
  v_mov_b32 v4, 0x3f803f80
  v_and_b32 v5, 27, v0
  v_cmp_eq_u32 vcc, 16, v5
  v_mov_b32 v5, 0
  s_nop 0
  v_cndmask_b32 v4, v5, v4, vcc""")
    for b in range(NB):
        for r in range(8): A(f"  v_mov_b32 v{VB[b]+r}, v4")
    A(f"  v_mov_b32 v{S[1]+14}, 0\n  v_mov_b32 v{S[1]+15}, 0")
    A(f"""
  v_mov_b32 v6, {MISC+4}
  v_mov_b32 v7, 1
  s_waitcnt vmcnt(0)""")
    if os.environ.get("HST"): stamp(A, 3)
    A(f"""
  s_mov_b64 exec, 1
  ds_add_u32 v6, v7
  s_mov_b64 exec, -1
  s_cmp_lg_u32 s24, 0
  s_cbranch_scc1 {name}_a_wait
{name}_a_cnt:
  ds_read_b32 v8, v6
  s_waitcnt lgkmcnt(0)
  v_readfirstlane_b32 s30, v8
  s_nop 0
  s_cmp_ge_u32 s30, 4
  s_cbranch_scc0 {name}_a_cnt
  s_lshl_b32 s30, s62, 5
  s_add_u32 s30, s30, s63
  s_lshl_b32 s30, s30, 6
  s_add_u32 s30, s30, {hex(WS_FQ)}
  v_mov_b32 v8, s30
  v_mov_b32 v9, s3
  s_mov_b64 exec, 1
  buffer_store_dword v9, v8, s[20:23], 0 offen sc1
  s_mov_b64 exec, -1""")
    if os.environ.get("HST"): stamp(A, 6)
    A(f"""
  s_lshr_b32 s30, s28, 2
  s_lshl_b32 s30, s30, 5
  v_and_b32 v8, 31, v0
  v_add_u32 v8, s30, v8
  v_lshlrev_b32 v8, 6, v8
  v_add_u32 v8, {hex(WS_FQ)}, v8""")
    poll(A, name, 8, 9, "A")
    A(f"""
  ds_write_b32 v6, v7 offset:4
  s_branch {name}_a_go
{name}_a_wait:
  ds_read_b32 v8, v6 offset:4
  s_waitcnt lgkmcnt(0)
  v_readfirstlane_b32 s30, v8
  s_nop 0
  s_cmp_lg_u32 s30, 0
  s_cbranch_scc1 {name}_a_go
  s_sleep 1
  s_branch {name}_a_wait
{name}_a_go:""")
    if not os.environ.get("CHST"): stamp(A, 4)
    A(f"""
  s_setprio {APRIO}
  buffer_load_dwordx4 {vr(KB[0],4)}, v1, s[20:23], s32 offen{SC}
  buffer_load_dwordx4 {vr(Q,4)}, v1, s[20:23], s34 offen{SC}
  s_mov_b64 exec, s[36:37]
  buffer_load_dwordx4 {vr(VB[0],4)}, v2, s[20:23], s35 offen{SC}
  buffer_load_dwordx4 {vr(VB[0]+4,4)}, v2, s[20:23], s35 offen offset:512{SC}
  s_mov_b64 exec, -1""")
    for j in range(1, 8):
        if j == 4: A("  s_add_u32 s34, s34, 4096")
        A(f"  buffer_load_dwordx4 {vr(Q+4*j,4)}, v1, s[20:23], s34 offen" + (f" offset:{(j%4)*1024}" if j % 4 else "") + SC)
    for t in range(1, NB-1):
        A(f"  buffer_load_dwordx4 {vr(KB[t],4)}, v1, s[20:23], s32 offen offset:{t*1024}{SC}")
        A(f"  s_mov_b64 exec, s[36:37]")
        A(f"  buffer_load_dwordx4 {vr(VB[t],4)}, v2, s[20:23], s35 offen offset:{t*1024}{SC}")
        A(f"  buffer_load_dwordx4 {vr(VB[t]+4,4)}, v2, s[20:23], s35 offen offset:{t*1024+512}{SC}")
        A(f"  s_mov_b64 exec, -1")
    A(f"""
  s_add_u32 s30, s32, {(NB-1)*1024}
  s_add_u32 s31, s35, {(NB-1)*1024}""")
    for r in range(8): A(f"  v_mov_b32 v{P+r}, 0")
    A("  s_nop 1")
    for j in range(8): A(f"  {MFMA} {vr(O+16*j,16)}, {vr(P,4)}, {vr(P+4,4)}, 0")
    A(f"  s_waitcnt vmcnt({3*(NB-2)})")
    if not os.environ.get("CHST"): stamp(A, 5)
    A(f"""
  {MFMA} {vr(S[0],16)}, {vr(KB[0],4)}, {vr(Q,4)}, 0
  s_mov_b32 s38, 0
  s_nop 7
  s_nop 3
.p2align 6
{name}_aloop:""")
    for kb in range(NB):
        for jq in range(8): attn_step(A, kb, jq)
    A(f"""
  s_add_u32 s38, s38, 1
  s_cmp_lt_u32 s38, {16//NB}
  s_cbranch_scc1 {name}_aloop
  v_cvt_pk_bf16_f32 v{P+7}, v{S[1]+14}, v{S[1]+15}
  s_nop 1
  {MFMA} {vr(O+16*7,16)}, {vr(VB[NB-1]+4,4)}, {vr(P+4,4)}, {vr(O+16*7,16)}
  s_waitcnt vmcnt(0)
  v_mov_b32 v4, 0
  v_mov_b32 v5, 0
  v_mov_b32 v6, 0
  v_mov_b32 v7, 0""")
    if not os.environ.get("CHST") and not os.environ.get("HST"): stamp(A, 6)
    for j in range(7):
        for r in range(0, 8, 2):
            A(f"  v_pk_fma_f32 v[4:5], {vr(O+16*j+r,2)}, v[6:7], v[4:5]")
    A(f"""
  s_mov_b32 s40, 0x1f800000                    ; 2^-64
  s_mov_b32 s41, 0x5f800000                    ; 2^64
  s_mov_b64 s[42:43], exec""")
    for j in range(8):
        if j == 7:
            for r in range(0, 8, 2):
                A(f"  v_pk_fma_f32 v[4:5], {vr(O+16*j+r,2)}, v[6:7], v[4:5]")
        A(f"""  v_cmp_le_f32 vcc, s40, v{O+16*j+8}
  s_and_b64 s[42:43], s[42:43], vcc
  v_cmp_ge_f32 vcc, s41, v{O+16*j+8}
  s_and_b64 s[42:43], s[42:43], vcc""")
    A(f"""
  v_add_f32 v4, v4, v5
  v_cmp_eq_f32 vcc, v4, v4
  s_and_b64 s[42:43], s[42:43], vcc
  s_cmp_eq_u64 s[42:43], exec
  s_cbranch_scc0 {name}_fallback""")
    for r in range(8): A(f"  v_mov_b32 v{M+r}, 0")
    A(f"  s_branch {name}_adone\n{name}_fallback:")
    for r in range(8): A(f"  v_mov_b32 v{M+r}, 0xff800000")
    A(f"""
  s_mov_b32 s38, 0
  s_mov_b32 s30, s32
{name}_fb1:
  buffer_load_dwordx4 {vr(KB[0],4)}, v1, s[20:23], s30 offen{SC}
  s_waitcnt vmcnt(0)""")
    for j in range(8):
        A(f"  {MFMA} {vr(S[0],16)}, {vr(KB[0],4)}, {vr(Q+4*j,4)}, 0")
        A("  s_nop 7\n  s_nop 7")
        for r in range(0, 16, 2):
            A(f"  v_max3_f32 v{M+j}, v{S[0]+r}, v{S[0]+r+1}, v{M+j}")
    A(f"""
  s_add_u32 s30, s30, 1024
  s_add_u32 s38, s38, 1
  s_cmp_lt_u32 s38, 16
  s_cbranch_scc1 {name}_fb1""")
    for j in range(8):
        A(f"  v_mov_b32 v4, v{M+j}\n  s_nop 1\n  v_permlane32_swap_b32 v4, v{M+j}\n  s_nop 1\n  v_max_f32 v{M+j}, v4, v{M+j}")
    for r in range(128): A(f"  v_mov_b32 v{O+r}, 0")
    A(f"""
  s_mov_b32 s38, 0
  s_mov_b32 s30, s32
  s_mov_b32 s31, s35
{name}_fb2:
  buffer_load_dwordx4 {vr(KB[0],4)}, v1, s[20:23], s30 offen{SC}
  s_mov_b64 exec, s[36:37]
  buffer_load_dwordx4 {vr(VB[0],4)}, v2, s[20:23], s31 offen{SC}
  buffer_load_dwordx4 {vr(VB[0]+4,4)}, v2, s[20:23], s31 offen offset:512{SC}
  s_mov_b64 exec, -1
  s_waitcnt vmcnt(0)""")
    for j in range(8):
        A(f"  {MFMA} {vr(S[0],16)}, {vr(KB[0],4)}, {vr(Q+4*j,4)}, 0")
        A("  s_nop 7\n  s_nop 7")
        for r in range(16): A(f"  v_sub_f32 v{S[0]+r}, v{S[0]+r}, v{M+j}")
        for r in range(16): A(f"  v_exp_f32 v{S[0]+r}, v{S[0]+r}")
        A("  s_nop 0")
        for r in range(8): A(f"  v_cvt_pk_bf16_f32 v{P+r}, v{S[0]+2*r}, v{S[0]+2*r+1}")
        A("  s_nop 1")
        A(f"  {MFMA} {vr(O+16*j,16)}, {vr(VB[0],4)}, {vr(P,4)}, {vr(O+16*j,16)}")
        A(f"  {MFMA} {vr(O+16*j,16)}, {vr(VB[0]+4,4)}, {vr(P+4,4)}, {vr(O+16*j,16)}")
    A(f"""
  s_add_u32 s30, s30, 1024
  s_add_u32 s31, s31, 1024
  s_add_u32 s38, s38, 1
  s_cmp_lt_u32 s38, 16
  s_cbranch_scc1 {name}_fb2
  s_nop 7
  s_nop 7
{name}_adone:
  s_mul_i32 s40, s24, {PART_W}
  s_add_u32 s40, s40, {APART}
  v_add_u32 v4, s40, v1
  v_lshlrev_b32 v5, 3, v0
  v_add_u32 v5, s40, v5""")
    for j in range(8):
        A(f"  v_mov_b32 v{O+16*j+9}, v{M+j}")
        A(f"  ds_write_b128 v4, {vr(O+16*j,4)} offset:{j*TILE_P}")
        A(f"  ds_write_b128 v4, {vr(O+16*j+4,4)} offset:{j*TILE_P+1024}")
        A(f"  ds_write_b64 v5, {vr(O+16*j+8,2)} offset:{j*TILE_P+2048}")
    A(f"""
  s_waitcnt lgkmcnt(0)
  s_barrier""")
    merge_tile(A, 64, 16, "s24")
    A("  s_waitcnt vmcnt(0)\n  s_barrier")
    stamp_flush(A, 0, "s81", 8)
    A("  s_endpgm")

def gen_g(A, name):
    ACCB = 64; ACCA = 128; ACT = 192; WF = [16, 24]; D = 8
    vq = VmQ()
    srd(A, 20, 8, WS_TOTAL)
    srd(A, 12, 56, 1376*1024)
    A(f"""
  s_lshr_b32 s26, s25, 1
  s_lshl_b32 s26, s26, 3
  s_lshr_b32 s28, s2, 3
  s_and_b32 s28, s28, 7
  s_add_u32 s26, s26, s28                      ; tb
  s_and_b32 s28, s25, 1
  s_lshl_b32 s28, s28, 2
  s_lshr_b32 s30, s2, 6
  s_add_u32 s28, s28, s30                      ; nb
  s_mul_i32 s33, s24, 22
  s_cmp_eq_u32 s24, 3
  s_cselect_b32 s30, 1, 0
  s_sub_u32 s33, s33, s30
  s_cmp_ge_u32 s24, 2
  s_cselect_b32 s34, 21, 22                    ; n steps
  s_lshl_b32 s35, s33, 14
  s_lshl_b32 s36, s28, 7
  s_add_u32 s35, s35, s36                      ; W soffset
  s_mul_i32 s36, s26, 172                      ; 2*tb*86
  s_add_u32 s36, s36, s33
  s_lshl_b32 s36, s36, 10
  s_add_u32 s36, s36, {hex(WS_HF)}
  s_mov_b32 s37, {86*1024}
  s_lshl_b32 s38, s24, 14
  s_mov_b32 s42, 0x40000000
  v_lshrrev_b32 v2, 3, v0
  v_lshrrev_b32 v3, 4, v0
  v_and_b32 v3, 1, v3
  v_lshlrev_b32 v3, 2, v3
  v_and_b32 v5, 7, v0
  v_xor_b32 v3, v3, v5
  v_lshlrev_b32 v3, 4, v3
  v_lshl_add_u32 v2, v2, 10, v3
  v_lshlrev_b32 v3, 4, v0                      ; v3 = lane*16
  v_lshrrev_b32 v4, 5, v0
  v_and_b32 v5, 15, v0
  v_lshrrev_b32 v6, 2, v5
  v_lshl_add_u32 v4, v4, 2, v6                 ; row
  v_lshrrev_b32 v7, 1, v6
  v_and_b32 v7, 1, v7                          ; (row>>1)&1
  v_lshlrev_b32 v4, 7, v4
  v_lshl_add_u32 v4, v7, 6, v4
  v_lshrrev_b32 v6, 4, v0
  v_and_b32 v6, 1, v6
  v_lshl_add_u32 v4, v6, 5, v4
  v_and_b32 v6, 3, v5
  v_lshl_add_u32 v4, v6, 3, v4
  v_xor_b32 v7, 64, v4
  v_add_u32 v4, s38, v4
  v_add_u32 v7, s38, v7
""")
    def issue_w(s, wso, masked):
        slot = s % D
        if masked:
            A(f"  s_cmp_gt_u32 s34, {s}\n  s_cselect_b32 s40, {wso}, s42"); w = "s40"
        else: w = wso
        A(f"  s_add_u32 m0, s38, {slot*2048}")
        A(f"  s_add_u32 s44, {w}, 8192")
        A(f"  buffer_load_dwordx4 v2, s[12:15], {w} offen lds")
        A(f"  s_add_u32 m0, s38, {slot*2048+1024}")
        A(f"  s_add_u32 {wso}, {wso}, 16384")
        A(f"  buffer_load_dwordx4 v2, s[12:15], s44 offen lds")
        vq.issue(("w", s)); vq.issue(("w", s))
    def issue_a(s, aso, masked):
        slot = s % D
        if masked:
            A(f"  s_cmp_gt_u32 s34, {s}\n  s_cselect_b32 s41, {aso}, s42"); a = "s41"
        else: a = aso
        A(f"  s_add_u32 s43, {a}, s37")
        A(f"  buffer_load_dwordx4 {vr(ACT+8*slot,4)}, v3, s[20:23], {a} offen{SC}")
        A(f"  buffer_load_dwordx4 {vr(ACT+8*slot+4,4)}, v3, s[20:23], s43 offen{SC}")
        A(f"  s_add_u32 {aso}, {aso}, 1024")
        vq.issue(("a", s)); vq.issue(("a", s))
    def trreads(s, buf):
        slot = s % D
        for t in range(2):
            A(f"  ds_read_b64_tr_b16 {vr(WF[buf]+4*t,2)}, v{4 if t == 0 else 7} offset:{slot*2048}")
            A(f"  ds_read_b64_tr_b16 {vr(WF[buf]+4*t+2,2)}, v{4 if t == 0 else 7} offset:{slot*2048 + 1024}")
    def run_steps(nstep, acc, wso, aso, masked, pre_w, pre_a):
        iw, ia = pre_w, pre_a
        vq.wait(A, {("w", 0)})
        trreads(0, 0)
        for s in range(nstep):
            slot = s % D; b = s & 1
            if s + 1 < nstep:
                vq.wait(A, {("w", s+1), ("a", s)})
                trreads(s + 1, b ^ 1)
                A("  s_waitcnt lgkmcnt(4)")
            else:
                vq.wait(A, {("a", s)})
                A("  s_waitcnt lgkmcnt(0)")
            for t in range(2):
                for u in range(2):
                    a = vr(acc+16*(2*t+u), 16)
                    A(f"  {MFMA} {a}, {vr(WF[b]+4*t,4)}, {vr(ACT+8*slot+4*u,4)}, {a if s > 0 else 0}")
            if iw < nstep: issue_w(iw, wso, masked); iw += 1
            if ia < nstep: issue_a(ia, aso, masked); ia += 1
    for s in range(D): issue_w(s, "s35", True)
    A(f"""
  s_lshr_b32 s30, s26, 1
  s_lshl_b32 s30, s30, 4
  v_and_b32 v5, 15, v0
  v_add_u32 v5, s30, v5
  v_lshlrev_b32 v5, 6, v5
  v_add_u32 v5, {hex(WS_F1)}, v5""")
    poll(A, name, 5, 6, "H")
    vq.drain()
    if not os.environ.get("CHST"): stamp(A, 4)
    A(f"""
  v_and_b32 v5, 31, v0
  v_lshlrev_b32 v5, 2, v5
  s_lshl_b32 s39, s26, 8
  s_add_u32 s39, s39, {hex(WS_G)}
  buffer_load_dword v8, v5, s[20:23], s39 offen sc1
  buffer_load_dword v9, v5, s[20:23], s39 offen offset:128 sc1""")
    vq.issue("g"); vq.issue("g")
    for s in range(D): issue_a(s, "s36", True)
    A(f"  s_setprio {GPRIO}")
    vq.q = [("w", s) for s in range(D)] + vq.q
    if os.environ.get("GSKIP"):
        A("  s_waitcnt vmcnt(0)"); vq.drain()
    else:
        run_steps(22, ACCB, "s35", "s36", True, D, D)
    if not os.environ.get("CHST"): stamp(A, 5)
    A("  s_setprio 2\n  s_nop 7\n  v_sub_f32 v10, 1.0, v8\n  v_sub_f32 v11, 1.0, v9\n  s_nop 7")
    for t in range(2):
        for u in range(2):
            for r in range(16):
                k = 16*(2*t+u)+r
                A(f"  v_mul_f32 v{ACCB+k}, v{10+u}, v{ACCB+k}")
    srd(A, 12, 58, 512*1024)
    A(f"""
  s_setprio 2
  s_lshl_b32 s35, s24, 17
  s_lshl_b32 s36, s28, 7
  s_add_u32 s35, s35, s36
  s_lshl_b32 s36, s26, 6                       ; (2tb)*32
  s_lshl_b32 s33, s24, 3
  s_add_u32 s36, s36, s33
  s_lshl_b32 s36, s36, 10
  s_add_u32 s36, s36, {hex(WS_OF)}
  s_mov_b32 s37, {32*1024}""")
    vq.drain()
    A("  s_waitcnt vmcnt(0)")
    for s in range(8): issue_w(s, "s35", False)
    A(f"""
  s_lshr_b32 s30, s2, 3
  s_and_b32 s30, s30, 3
  s_lshl_b32 s31, s25, 2
  s_mov_b32 s46, s28
  s_mov_b32 s47, s29
  s_add_u32 s28, s30, s31                      ; head
  s_lshr_b32 s29, s2, 5                        ; qb
  s_add_u32 s45, s24, 4
  v_mov_b32 v1, v3
  s_barrier                                    ; X""")
    merge_tile(A, 192, 32, "s45")
    A(f"""
  s_mov_b32 s28, s46
  s_mov_b32 s29, s47
  s_waitcnt vmcnt(0)
  s_barrier                                    ; Y
  s_cmp_lg_u32 s24, 0
  s_cbranch_scc1 {name}_g_nopost2
  s_lshr_b32 s30, s2, 3
  s_and_b32 s30, s30, 3
  s_lshl_b32 s31, s25, 2
  s_add_u32 s30, s30, s31                      ; head
  s_lshr_b32 s31, s2, 5                        ; qb
  s_lshl_b32 s31, s31, 5
  s_add_u32 s30, s30, s31
  s_lshl_b32 s30, s30, 6
  s_add_u32 s30, s30, {hex(WS_FO)}
  v_mov_b32 v5, s30
  v_mov_b32 v6, s3
  s_mov_b64 exec, 1
  buffer_store_dword v6, v5, s[20:23], 0 offen sc1
  s_mov_b64 exec, -1
{name}_g_nopost2:
  s_lshr_b32 s30, s26, 2
  s_lshl_b32 s30, s30, 5
  s_lshl_b32 s31, s24, 3
  s_add_u32 s30, s30, s31
  v_and_b32 v5, 7, v0
  v_add_u32 v5, s30, v5
  v_lshlrev_b32 v5, 6, v5
  v_add_u32 v5, {hex(WS_FO)}, v5""")
    poll(A, name, 5, 6, "O")
    vq.drain()
    if not os.environ.get("CHST"): stamp(A, 6)
    for s in range(8): issue_a(s, "s36", False)
    vq.q = [("w", s) for s in range(8)] + vq.q
    run_steps(8, ACCA, "s35", "s36", False, 8, 8)
    A("  s_nop 7\n  s_nop 7")
    for t in range(2):
        for u in range(2):
            for r in range(16):
                k = 16*(2*t+u)+r
                A(f"  v_fmac_f32 v{ACCB+k}, v{8+u}, v{ACCA+k}")
    A("  v_add_u32 v5, s38, v3")
    for tile in range(4):
        for q in range(4):
            A(f"  ds_write_b128 v5, {vr(ACCB+16*tile+4*q,4)} offset:{tile*4096+q*1024}")
    A(f"""
  s_waitcnt lgkmcnt(0)
  s_barrier
  s_lshl_b32 s40, s24, 12
  v_add_u32 v5, s40, v3""")
    for w in range(4):
        for q in range(4):
            A(f"  ds_read_b128 {vr(64+16*w+4*q,4)}, v5 offset:{w*16384+q*1024}")
    A("  s_waitcnt lgkmcnt(0)")
    for r in range(16):
        for w in range(1, 4): A(f"  v_add_f32 v{64+r}, v{64+r}, v{64+16*w+r}")
    for r in range(8): A(f"  v_cvt_pk_bf16_f32 v{16+r}, v{64+2*r}, v{65+2*r}")
    A(f"  s_load_dwordx2 s[60:61], s[0:1], {KA_OUT}\n  s_waitcnt lgkmcnt(0)")
    srd(A, 16, 60, 2048*1024)
    A(f"""
  s_and_b32 s41, s24, 1
  s_lshr_b32 s40, s24, 1
  s_lshl_b32 s42, s26, 6
  s_lshl_b32 s41, s41, 5
  s_add_u32 s42, s42, s41
  s_lshl_b32 s42, s42, 10
  s_lshl_b32 s43, s28, 7
  s_lshl_b32 s40, s40, 6
  s_add_u32 s43, s43, s40
  s_add_u32 s42, s42, s43
  v_and_b32 v5, 31, v0
  v_lshlrev_b32 v5, 10, v5
  v_lshrrev_b32 v6, 5, v0
  v_lshl_add_u32 v5, v6, 4, v5
  v_permlane32_swap_b32 v16, v18
  v_permlane32_swap_b32 v17, v19
  v_permlane32_swap_b32 v20, v22
  v_permlane32_swap_b32 v21, v23
  s_nop 1
  buffer_store_dwordx4 v[16:19], v5, s[16:19], s42 offen
  buffer_store_dwordx4 v[20:23], v5, s[16:19], s42 offen offset:32
  s_or_b32 s30, s2, s24
  s_cmp_lg_u32 s30, 0
  s_cbranch_scc1 {name}_g_noepoch
  v_mov_b32 v5, {WS_EPOCH}
  v_mov_b32 v6, s3
  s_mov_b64 exec, 1
  buffer_store_dword v6, v5, s[20:23], 0 offen
  s_mov_b64 exec, -1
{name}_g_noepoch:""")
    stamp_flush(A, 0, "s81", 8)
    A("  s_endpgm")

def gen_z(A, name=NAME):
    kernel_begin(A, name)
    stamp_init(A)
    A(f"""
  s_cmp_ge_u32 s2, 256
  s_cbranch_scc1 {name}_end
  s_load_dwordx4 s[4:7], s[0:1], {KA_AX}       ; A_x, wqkv
  s_load_dwordx4 s[52:55], s[0:1], {KA_WG}
  s_load_dwordx2 s[8:9], s[0:1], {KA_WS}
  s_load_dwordx2 s[10:11], s[0:1], {KA_GW}
  s_load_dwordx2 s[56:57], s[0:1], {KA_WD}
  s_load_dwordx2 s[58:59], s[0:1], {KA_WO}
  v_lshrrev_b32 v1, 6, v0
  v_and_b32 v0, 63, v0
  s_and_b32 s25, s2, 7
  s_lshr_b32 s27, s2, 3
  v_readfirstlane_b32 s24, v1
  s_and_b32 s26, s25, 3
  s_lshl_b32 s26, s26, 2
  s_and_b32 s27, s27, 3
  s_add_u32 s26, s26, s27                      ; rb = (j&3)*4 + ((c>>3)&3)
  s_lshr_b32 s27, s25, 2
  s_lshl_b32 s27, s27, 3
  s_lshr_b32 s28, s2, 5
  s_xor_b32 s28, s28, {int(os.environ.get("CGX", "0"))}
  s_add_u32 s27, s27, s28                      ; cg = (j>>2)*8 + (c>>5)
  s_lshl_b32 s29, s26, 4
  s_add_u32 s29, s29, s27
  s_and_b32 s63, s25, 3
  s_lshl_b32 s63, s63, 3
  s_lshr_b32 s62, s2, 3
  s_and_b32 s62, s62, 7
  s_add_u32 s63, s63, s62                      ; rb1 = (j&3)*8 + ((c>>3)&7)
  s_lshr_b32 s62, s25, 2
  s_lshl_b32 s62, s62, 2
  s_lshr_b32 s30, s2, 6
  s_add_u32 s62, s62, s30                      ; cq = (j>>2)*4 + (c>>6)
  s_waitcnt lgkmcnt(0)
  s_load_dword s3, s[8:9], {WS_EPOCH}""")
    if asmlib.STAMPS: A("  s_mov_b32 s81, s24")
    A(f"""
  s_cmp_lt_u32 s24, 4
  s_cbranch_scc1 {name}_compute""")
    srd(A, 20, 8, WS_TOTAL)
    gen_loader(A, name)
    gen_g(A, name)
    A(f"{name}_compute:")
    A("  s_waitcnt lgkmcnt(0)")
    gen_p1(A, name)
    gen_attn(A, name)
    A(f"{name}_end:\n  s_endpgm")
    return kernel_desc(name, 256, 96)
```

```python
from common import *
import asmlib, os
from asmlib import stamp, stamp_init, stamp_flush
NST1 = 4; STG1 = 32768; XB1 = 8192
NST2 = 3; XB = 16384; WB = 12288
STG2 = XB + 2*WB
MISC = 163584
LDS_Z = 163840
HL = 65536
LAG0 = int(os.environ.get("LAG0", "4"))
AHEAD = int(os.environ.get("AHEAD", "2"))

SC = " sc1"
APRIO = int(os.environ.get('APRIO', '1')); GPRIO = int(os.environ.get('GPRIO', '0'))
SPIN_MAX = 1 << 22
NAME = "gated_mix__mha_block__swiglu_ffn__prompt_kernel"

def poll(A, name, vaddr, vtmp, uid):
    A(f"""
  s_mov_b32 s87, 0
{name}_poll{uid}:
  buffer_load_dword v{vtmp}, v{vaddr}, s[20:23], 0 offen sc1
  s_waitcnt vmcnt(0)
  v_cmp_eq_u32 vcc, s3, v{vtmp}
  s_cmp_eq_u64 vcc, exec
  s_cbranch_scc1 {name}_poll{uid}_ok
  s_add_u32 s87, s87, 1
  s_cmp_lt_u32 s87, {SPIN_MAX}
  s_cbranch_scc0 {name}_poll{uid}_ok
  s_sleep 2
  s_branch {name}_poll{uid}
{name}_poll{uid}_ok:""")

NPRE = int(os.environ.get('NPRE', '1'))
TOUCHQ = int(os.environ.get('TOUCHQ', '99'))
def gen_loader(A, name):
    DX = 8; DQ = [9, 10, 11]; DG = [12, 13, 14]; DU = [56, 57, 58]
    vq = VmQ()
    A(f"""
  s_sub_u32 s24, s24, 4                        ; lw
  v_lshrrev_b32 v3, 3, v0                      ; l>>3
  v_lshrrev_b32 v4, 4, v0                      ; l>>4
  s_and_b32 s32, s24, 1
  s_lshl_b32 s32, s32, 2
  v_add_u32 v4, s32, v4                        ; f
  v_and_b32 v5, 7, v0
  v_xor_b32 v5, v5, v4                         ; c
  v_lshlrev_b32 v5, 4, v5
  v_lshl_add_u32 v{DX}, v3, 10, v5             ; voff_x
  s_lshl_b32 s35, s24, 13
  s_lshl_b32 s34, s63, 16
  s_add_u32 s33, s34, s35
  s_lshl_b32 s34, s26, 17
  s_add_u32 s34, s34, s35
  s_lshl_b32 s36, s24, 10
  s_and_b32 s28, s63, {int(os.environ.get('ROT1', '7'))}
  s_and_b32 s47, s26, {int(os.environ.get('ROT2', '7'))}
  s_mov_b32 s61, s47
  s_mul_i32 s35, s24, {16*3072}
  s_mul_i32 s48, s24, {16*2752}
  s_mul_i32 s37, s24, 6144
  s_add_u32 s37, s37, {XB1}
  s_mul_i32 s60, s24, 3072
  s_add_u32 s60, s60, {XB}
  s_waitcnt lgkmcnt(0)""")
    srd(A, 12, 4, 2048*1024)
    def stage(q): return (q % NST1) * STG1 if q < 8 else ((q - 8) % NST2) * STG2
    def chunk_regs(q):
        A(f"  s_add_u32 s49, s{28 if q < 8 else 61}, {q & 7}\n  s_and_b32 s49, s49, 7")
        A(f"  s_mul_i32 s50, s49, {64*(3072 if q < 8 else 2752)}\n  s_lshl_b32 s49, s49, 7")
        A(f"  s_add_u32 s49, s49, s{33 if q < 8 else 34}\n  s_add_u32 s50, s50, s{35 if q < 8 else 48}")
        if q < 8: A(f"  s_add_u32 s51, s50, {8*3072}")
    def dma_x(q, n):
        if n == 0: chunk_regs(q)
        A(f"  s_add_u32 m0, s36, {stage(q) + n*4096}")
        A(f"  s_add_u32 s38, s49, {n*32768}")
        A(f"  buffer_load_dwordx4 v{DX}, s[12:15], s38 offen lds")
        vq.issue(("c", q))
    for n in range(2): dma_x(0, n)
    srd(A, 16, 6, 512*3072)
    A(f"""
  s_lshl_b32 s32, s62, 7
  s_mul_i32 s39, s27, 192
  v_lshlrev_b32 v4, 4, v0                      ; lane*16""")
    for p in range(3):
        A(f"""
  v_add_u32 v5, {1024*p}, v4                   ; o
  v_lshrrev_b32 v6, 7, v5                      ; u = o/128
  v_mul_u32_u24 v7, 171, v6
  v_lshrrev_b32 v7, 9, v7                      ; row = u/3
  v_mul_u32_u24 v18, 3, v7
  v_sub_u32 v6, v6, v18                        ; seg
  v_and_b32 v5, 127, v5                        ; within
  v_lshrrev_b32 v18, 1, v7
  v_and_b32 v18, 1, v18
  v_lshlrev_b32 v18, 6, v18
  v_xor_b32 v5, v5, v18
  v_mul_u32_u24 v18, 3072, v7
  v_lshl_add_u32 v18, v6, 10, v18
  v_add3_u32 v{DQ[p]}, v18, v5, s32""")
    def dma_list(q):
        if q < 8:
            L = [ (lambda n=n: dma_x(q, n)) for n in range(2) ]
            for p in range(6):
                def f(p=p):
                    A(f"  s_add_u32 m0, s37, {stage(q) + p*1024}")
                    A(f"  s_nop 0")
                    A(f"  buffer_load_dwordx4 v{DQ[p%3]}, s[16:19], s{50 if p < 3 else 51} offen lds")
                    vq.issue(("c", q))
                L.append(f)
            return L
        L = [ (lambda n=n: dma_x(q, n)) for n in range(4) ]
        for reg, (srdr, pats) in enumerate(((40, DG), (44, DU))):
            for p in range(3):
                def f(reg=reg, srdr=srdr, pats=pats, p=p):
                    A(f"  s_add_u32 m0, s60, {stage(q) + reg*WB + p*1024}")
                    A(f"  s_nop 0")
                    A(f"  buffer_load_dwordx4 v{pats[p]}, s[{srdr}:{srdr+3}], s50 offen lds")
                    vq.issue(("c", q))
                L.append(f)
        return L
    stream = []; ends = []
    for q in range(16):
        stream += dma_list(q); ends.append(len(stream))
    pos = [2]
    def issue_upto(n):
        while pos[0] < n:
            stream[pos[0]](); pos[0] += 1
    issue_upto(ends[NPRE])
    srd(A, 40, 52, 512*2752)
    srd(A, 44, 54, 512*2752)
    for p in range(3):
        A(f"""
  v_add_u32 v5, {1024*p}, v4
  v_lshrrev_b32 v6, 6, v5
  v_mul_u32_u24 v7, 171, v6
  v_lshrrev_b32 v7, 9, v7                      ; row
  v_mul_u32_u24 v18, 3, v7
  v_sub_u32 v6, v6, v18                        ; seg
  v_and_b32 v5, 63, v5
  v_lshl_add_u32 v19, v6, 6, v5
  v_mul_u32_u24 v18, 2752, v7""")
        for dst, x in ((DG[p], 0), (DU[p], 32)):
            A(f"""
  v_xor_b32 v6, {x}, v19
  v_add_u32 v6, s39, v6                        ; + cg*192
  v_add_u32 v{dst}, v18, v6
  v_cmp_le_u32 vcc, 2752, v6
  v_add_u32 v6, 0x40000000, v{dst}
  v_cndmask_b32 v{dst}, v{dst}, v6, vcc""")
    A(f"""
  s_lshl_b32 s30, s26, 7
  s_lshl_b32 s31, s27, 3
  s_add_u32 s30, s30, s31
  s_lshl_b32 s31, s24, 1
  s_add_u32 s30, s30, s31
  s_lshl_b32 s31, s30, 10
  v_lshlrev_b32 v2, 4, v0
  buffer_load_dwordx4 v[20:23], v2, s[12:15], s31 offen
  buffer_load_dwordx4 v[24:27], v2, s[12:15], s31 offen offset:1024
  global_load_dwordx4 v[28:31], v2, s[10:11]""")
    for _ in range(3): vq.issue("gin")
    A("  s_mov_b32 s88, s30")
    ACCF = 64
    F2 = [[16, 20, 24, 28, 32], [36, 40, 44, 48, 52]]
    XA2 = [160, 161, 162, 163]; WA2 = [164, 165, 166]; VC = 167; V1 = 168; VT = 169
    A(f"""
  s_lshr_b32 s30, s24, 1                       ; i
  s_and_b32 s31, s24, 1                        ; j
  v_and_b32 v48, 31, v0                        ; token
  v_lshrrev_b32 v49, 5, v0                     ; hh
  v_lshrrev_b32 v50, 1, v48
  v_and_b32 v50, 7, v50                        ; f
  s_lshl_b32 s32, s30, 13
  v_lshlrev_b32 v51, 7, v48""")
    for s_ in range(4):
        A(f"  v_add_u32 v52, {2*s_}, v49\n  v_xor_b32 v52, v52, v50\n  v_lshl_add_u32 v52, v52, 4, v51\n  v_add_u32 v{XA2[s_]}, s32, v52")
    A(f"""
  v_and_b32 v48, 15, v0                        ; i16
  v_lshrrev_b32 v50, 4, v0
  v_and_b32 v50, 1, v50                        ; gu
  v_lshrrev_b32 v52, 2, v48
  v_lshl_add_u32 v52, v49, 3, v52
  v_mul_u32_u24 v51, 192, v52
  v_and_b32 v52, 3, v48
  v_lshl_add_u32 v51, v52, 3, v51
  v_mul_u32_u24 v54, {WB}, v50
  v_add_u32 v54, v54, v51
  v_add_u32 v54, {XB}, v54
  s_mul_i32 s32, s31, 3                        ; 3j""")
    for t in range(3):
        A(f"  s_add_u32 s39, s32, {t}\n  v_xor_b32 v55, s39, v50\n  v_lshl_add_u32 v{WA2[t]}, v55, 5, v54")
    A(f"  v_mov_b32 v{VC}, {MISC}\n  v_mov_b32 v{V1}, 1")
    for r in range(96): A(f"  v_mov_b32 v{ACCF+r}, 0")
    stamp(A, 1)
    for q in range(8):
        if q == 0: tgt = ends[NPRE]
        else:
            hi = min(q + AHEAD, 7)
            if q == 7 and not os.environ.get("HOLD"): hi = 8
            tgt = ends[hi]
        issue_upto(tgt)
        if os.environ.get("CHST") == "1" and q in (0, 2, 4, 6): stamp(A, 3 + q//2)
        vq.wait(A, {("c", q)})
        if os.environ.get("CHST") == "2" and q in (0, 2, 4, 6): stamp(A, 3 + q//2)
        A("  s_barrier")
        if q == TOUCHQ:
            A(f"""
  v_and_b32 v59, 31, v0
  v_lshrrev_b32 v60, 5, v0
  v_mul_u32_u24 v59, 2752, v59
  v_lshl_add_u32 v59, v60, 7, v59
  s_and_b32 s82, s26, 3
  s_lshl_b32 s82, s82, 2
  s_add_u32 s82, s82, s24
  s_mul_i32 s82, s82, {32*2752}
  s_mul_i32 s83, s27, 192
  s_add_u32 s82, s82, s83
  buffer_load_dword v60, v59, s[40:43], s82 offen
  buffer_load_dword v61, v59, s[44:47], s82 offen""")
            vq.issue("touch"); vq.issue("touch")
        if q == 1:
            A("""
  v_lshlrev_b32 v32, 16, v28
  v_and_b32 v33, 0xffff0000, v28
  v_lshlrev_b32 v34, 16, v29
  v_and_b32 v35, 0xffff0000, v29
  v_lshlrev_b32 v36, 16, v30
  v_and_b32 v37, 0xffff0000, v30
  v_lshlrev_b32 v38, 16, v31
  v_and_b32 v39, 0xffff0000, v31""")
            for t, base, acc in ((0, 20, 40), (1, 24, 41)):
                for j in range(4):
                    A(f"  v_lshlrev_b32 v42, 16, v{base+j}")
                    A(f"  v_and_b32 v43, 0xffff0000, v{base+j}")
                    if j == 0: A(f"  v_mul_f32 v{acc}, v42, v32")
                    else: A(f"  v_fmac_f32 v{acc}, v42, v{32+2*j}")
                    A(f"  v_fmac_f32 v{acc}, v43, v{33+2*j}")
            for ctl in ("row_shr:1", "row_shr:2", "row_shr:4", "row_shr:8"):
                A("  s_nop 1")
                A(f"  v_add_f32_dpp v40, v40, v40 {ctl} row_mask:0xf bank_mask:0xf bound_ctrl:0")
                A(f"  v_add_f32_dpp v41, v41, v41 {ctl} row_mask:0xf bank_mask:0xf bound_ctrl:0")
            A(f"""  s_nop 1
  v_readlane_b32 s72, v40, 15
  v_readlane_b32 s73, v40, 31
  v_readlane_b32 s74, v40, 47
  v_readlane_b32 s75, v40, 63
  v_readlane_b32 s39, v41, 15
  v_readlane_b32 s31, v41, 31
  v_readlane_b32 s32, v41, 47
  v_readlane_b32 s76, v41, 63
  s_nop 1
  v_mov_b32 v44, s72
  v_add_f32 v44, s73, v44
  v_add_f32 v44, s74, v44
  v_add_f32 v44, s75, v44
  v_mov_b32 v45, s39
  v_add_f32 v45, s31, v45
  v_add_f32 v45, s32, v45
  v_add_f32 v45, s76, v45
  v_cmp_eq_u32 vcc, 1, v0
  s_nop 1
  v_cndmask_b32 v44, v44, v45, vcc             ; lane1 -> token1, others token0
  v_mul_f32 v44, 0xbfb8aa3b, v44               ; -log2e * z
  v_exp_f32 v44, v44
  s_nop 0
  v_add_f32 v44, 1.0, v44
  v_rcp_f32 v44, v44
  s_lshl_b32 s72, s88, 2
  v_lshlrev_b32 v45, 2, v0
  v_add_u32 v45, s72, v45
  v_add_u32 v45, {hex(WS_G)}, v45
  v_cmp_gt_u32 vcc, 2, v0
  s_and_saveexec_b64 s[72:73], vcc
  buffer_store_dword v44, v45, s[20:23], 0 offen{SC}
  s_mov_b64 exec, s[72:73]
  s_mul_i32 s3, s3, 1664525
  s_add_u32 s3, s3, 1013904223                 ; hand-off tag of this launch""".replace("s72", "s82").replace("s73", "s83").replace("s74", "s84").replace("s75", "s85").replace("s76", "s86").replace("s[72:73]", "s[82:83]"))
            vq.issue("gout")
    A("  s_barrier")
    stamp(A, 2)
    if os.environ.get("HOLD"):
        A(f"""
{name}_g_hold:
  ds_read_b32 v{VT}, v{VC} offset:8
  s_waitcnt lgkmcnt(0)
  v_readfirstlane_b32 s39, v{VT}
  s_nop 0
  s_cmp_lg_u32 s39, 0
  s_cbranch_scc1 {name}_g_hold_ok
  s_sleep 2
  s_branch {name}_g_hold
{name}_g_hold_ok:""")
    def rd2(buf, s_):
        L = [f"  ds_read_b128 {vr(F2[buf][0],4)}, v{XA2[s_]}", f"  ds_read_b128 {vr(F2[buf][1],4)}, v{XA2[s_]} offset:4096"]
        for t in range(3):
            L.append(f"  ds_read_b64_tr_b16 {vr(F2[buf][2+t],2)}, v{WA2[t]} offset:{s_*3072}")
            L.append(f"  ds_read_b64_tr_b16 {vr(F2[buf][2+t]+2,2)}, v{WA2[t]} offset:{s_*3072 + 768}")
        return L
    def mf2(buf):
        L = []
        if os.environ.get("FNOMFMA"): return L
        for t in range(3):
            for u in range(2):
                a_ = vr(ACCF + 16*(2*t+u), 16)
                L.append(f"  {MFMA} {a_}, {vr(F2[buf][2+t],4)}, {vr(F2[buf][u],4)}, {a_}")
        return L
    def interleave(mf, rd, per):
        k = 0
        for m in mf:
            A(m)
            for _ in range(per):
                if k < len(rd): A(rd[k]); k += 1
        while k < len(rd): A(rd[k]); k += 1
    nsync = [0]
    def gsync(deferred=None):
        nsync[0] += 1
        A(f"  s_mov_b64 exec, 1\n  ds_add_u32 v{VC}, v{V1}\n  s_mov_b64 exec, -1")
        if deferred: deferred()
        L = A.newlabel(name + "_gs")
        A(f"""{L}:
  ds_read_b32 v{VT}, v{VC}
  s_waitcnt lgkmcnt(0)
  v_readfirstlane_b32 s39, v{VT}
  s_nop 0
  s_cmp_ge_u32 s39, {4*nsync[0]}
  s_cbranch_scc1 {L}_ok
  s_sleep 1
  s_branch {L}
{L}_ok:""")
    def deferred():
        A(f"  s_setprio {GPRIO}")
        for m in mf2(1): A(m)
        A("  s_setprio 2")
    for q in range(8, 16):
        A("  s_setprio 2")
        if q > 8:
            A("  s_waitcnt lgkmcnt(0)")
            d = STG2 if ((q - 8) % NST2) != 0 else -(NST2-1)*STG2
            for r in XA2 + WA2:
                A(f"  v_add_u32 v{r}, {d}, v{r}" if d > 0 else f"  v_subrev_u32 v{r}, {-d}, v{r}")
        if q == 8: issue_upto(ends[8])
        vq.wait(A, {("c", q)})
        if os.environ.get("CHST") == "3" and q in (9, 11, 13, 15): stamp(A, 3 + (q-9)//2)
        gsync(deferred if q > 8 else None)
        if os.environ.get("CHST") == "4" and q in (9, 11, 13, 15): stamp(A, 3 + (q-9)//2)
        if q == 8: issue_upto(ends[9])
        tgt = ends[min(q + 2, 15)]
        for l in rd2(0, 0): A(l)
        A(f"  s_setprio {GPRIO}")
        for s_ in range(3):
            b_ = s_ & 1
            A("  s_waitcnt lgkmcnt(0)")
            mf = mf2(b_); rd = rd2(b_ ^ 1, s_ + 1); k = 0
            for i_, m in enumerate(mf):
                A(m)
                for _ in range(2):
                    if k < len(rd): A(rd[k]); k += 1
                if i_ in (0, 2, 4, 5) and pos[0] < tgt: issue_upto(pos[0] + 1)
            while k < len(rd): A(rd[k]); k += 1
        issue_upto(tgt)
    A("  s_waitcnt lgkmcnt(0)")
    for m in mf2(1): A(m)
    if not os.environ.get("CHST"): stamp(A, 3)
    T = 170
    A(f"""
  s_setprio 2
  v_mov_b32 v178, 0xbfb8aa3b
  v_mov_b32 v179, 0xbfb8aa3b
  v_mov_b32 v188, 1.0
  v_mov_b32 v189, 1.0
  v_lshlrev_b32 v2, 4, v0
  s_lshl_b32 s51, s26, 2
  s_lshr_b32 s30, s24, 1
  s_lshl_b32 s30, s30, 1
  s_add_u32 s51, s51, s30
  s_mul_i32 s51, s51, 86
  s_mul_i32 s49, s27, 6
  s_and_b32 s31, s24, 1
  s_mul_i32 s31, s31, 3
  s_add_u32 s49, s49, s31
  s_add_u32 s51, s51, s49
  s_lshl_b32 s51, s51, 10
  s_add_u32 s51, s51, {hex(WS_HF)}
  s_mov_b32 s38, 0x40000000
  s_nop 3""")
    for t in range(3):
        A(f"  s_add_u32 s39, s49, {t}\n  s_cmp_lt_u32 s39, 86\n  s_cselect_b32 s39, s51, s38")
        for u in range(2 if not os.environ.get("FNOSILU") else 0):
            a_ = ACCF + 16*(2*t+u)
            for r in range(0, 8, 2): A(f"  v_pk_mul_f32 {vr(T+r,2)}, {vr(a_+r,2)}, v[178:179]")
            for r in range(8): A(f"  v_exp_f32 v{T+r}, v{T+r}")
            for r in range(0, 8, 2): A(f"  v_pk_mul_f32 {vr(a_+8+r,2)}, {vr(a_+r,2)}, {vr(a_+8+r,2)}")
            for r in range(0, 8, 2): A(f"  v_pk_add_f32 {vr(T+r,2)}, {vr(T+r,2)}, v[188:189]")
            for r in range(8): A(f"  v_rcp_f32 v{T+r}, v{T+r}")
            A(f"  s_add_u32 s31, s39, {t*1024 + u*86*1024}")
            for r in range(0, 8, 2): A(f"  v_pk_mul_f32 {vr(T+r,2)}, {vr(a_+8+r,2)}, {vr(T+r,2)}")
            d = 180 + 4*((2*t+u) % 2)
            for r in range(4): A(f"  v_cvt_pk_bf16_f32 v{d+r}, v{T+2*r}, v{T+2*r+1}")
            A(f"  buffer_store_dwordx4 {vr(d,4)}, v2, s[20:23], s31 offen{SC}")
    A(f"  s_waitcnt vmcnt(0)")
    gsync()
    A(f"""
  s_cmp_lg_u32 s24, 0
  s_cbranch_scc1 {name}_g_nopost
  s_lshl_b32 s30, s29, 6
  s_add_u32 s30, s30, {hex(WS_F1)}
  v_mov_b32 v5, s30
  v_mov_b32 v6, s3
  s_mov_b64 exec, 1
  buffer_store_dword v6, v5, s[20:23], 0 offen sc1
  s_mov_b64 exec, -1
{name}_g_nopost:""")

QACC, KACC, VACC = 160, 176, 192
def gen_p1(A, name):
    XA1 = [2, 3, 4, 5]; WQ = 6
    F1 = [[[208, 212, 216, 220], [224, 228, 232, 236]], [[16, 20, 24, 28], [32, 36, 40, 44]]]
    A(f"""
  s_cmp_lg_u32 s24, 0
  s_cbranch_scc1 {name}_nozero
  v_mov_b32 v48, {MISC}
  v_mov_b32 v50, 0
  v_mov_b32 v51, 0
  v_mov_b32 v52, 0
  v_mov_b32 v53, 0
  ds_write_b128 v48, v[50:53]
  s_waitcnt lgkmcnt(0)
{name}_nozero:
  s_and_b32 s30, s24, 1
  s_lshr_b32 s31, s24, 1
  v_and_b32 v48, 31, v0                        ; token
  v_lshrrev_b32 v49, 5, v0                     ; hh
  v_lshrrev_b32 v50, 1, v48
  v_and_b32 v50, 7, v50                        ; f
  s_lshl_b32 s34, s30, 12
  v_lshlrev_b32 v51, 7, v48""")
    for s in range(4):
        A(f"  v_add_u32 v52, {2*s}, v49\n  v_xor_b32 v52, v52, v50\n  v_lshl_add_u32 v52, v52, 4, v51\n  v_add_u32 v{XA1[s]}, s34, v52")
    A(f"""
  v_and_b32 v48, 15, v0                        ; i16
  v_lshrrev_b32 v50, 4, v0
  v_and_b32 v50, 1, v50                        ; u
  v_lshrrev_b32 v52, 2, v48                    ; i>>2
  v_lshrrev_b32 v53, 1, v52
  v_and_b32 v53, 1, v53                        ; swz
  v_xor_b32 v53, s31, v53
  v_lshl_add_u32 v52, v49, 3, v52
  v_mul_u32_u24 v51, 384, v52
  v_lshl_add_u32 v51, v53, 6, v51
  v_lshl_add_u32 v51, v50, 5, v51
  v_and_b32 v52, 3, v48
  v_lshl_add_u32 v51, v52, 3, v51
  v_add_u32 v{WQ}, {XB1}, v51""")
    for r in range(48): A(f"  v_mov_b32 v{QACC+r}, 0")
    def rd1(buf, sup):
        L = []
        for h in range(2):
            s = 2*sup + h; F = F1[buf][h]
            L.append(f"  ds_read_b128 {vr(F[0],4)}, v{XA1[s]}")
            for t in range(3):
                L.append(f"  ds_read_b64_tr_b16 {vr(F[1+t],2)}, v{WQ} offset:{s*6144 + t*128}")
                L.append(f"  ds_read_b64_tr_b16 {vr(F[1+t]+2,2)}, v{WQ} offset:{s*6144 + t*128 + 1536}")
        return L
    def mf1(buf):
        L = []
        for h in range(2):
            F = F1[buf][h]; x = vr(F[0],4)
            L += [f"  {MFMA} {vr(QACC,16)}, {vr(F[1],4)}, {x}, {vr(QACC,16)}",
                  f"  {MFMA} {vr(KACC,16)}, {vr(F[2],4)}, {x}, {vr(KACC,16)}",
                  f"  {MFMA} {vr(VACC,16)}, {x}, {vr(F[3],4)}, {vr(VACC,16)}"]
        return L
    def interleave(mf, rd, per):
        k = 0
        for m in mf:
            A(m)
            for _ in range(per):
                if k < len(rd): A(rd[k]); k += 1
        while k < len(rd): A(rd[k]); k += 1
    def advance(q, regs):
        d = STG1 if ((q+1) % NST1) != 0 else -(NST1-1)*STG1
        for r in regs:
            if d > 0: A(f"  v_add_u32 v{r}, {d}, v{r}")
            else: A(f"  v_subrev_u32 v{r}, {-d}, v{r}")
    stamp(A, 1)
    A("  s_barrier")
    for l in rd1(0, 0): A(l)
    for q in range(8):
        for sup in range(2):
            A("  s_waitcnt lgkmcnt(0)")
            if sup == 0: interleave(mf1(0), rd1(1, 1), 3)
            elif q < 7:
                advance(q, XA1 + [WQ])
                if os.environ.get("CHST") and q in (0, 2, 4, 6): stamp(A, 3 + q//2)
                A("  s_barrier")
                interleave(mf1(1), rd1(0, 0), 3)
            else:
                A("  s_barrier                                    ; B8")
                interleave(mf1(1), [], 3)
    stamp(A, 2)
    srd(A, 44, 8, WS_TOTAL)
    A(f"""
  v_lshlrev_b32 v56, 4, v0                     ; lane*16
  s_lshl_b32 s36, s63, 1
  s_add_u32 s37, s36, s30
  v_and_b32 v57, 15, v0
  v_lshlrev_b32 v57, 4, v57
  v_lshrrev_b32 v58, 5, v0
  v_lshl_add_u32 v57, v58, 8, v57
  v_lshrrev_b32 v58, 4, v0
  v_and_b32 v58, 1, v58
  v_lshl_add_u32 v57, v58, 16, v57             ; u*65536 + hh*256 + d*16
  s_lshl_b32 s39, s62, 1
  s_add_u32 s39, s39, s31
  s_lshl_b32 s39, s39, 7                       ; head*64
  s_add_u32 s40, s39, s37
  s_lshl_b32 s40, s40, 10
  s_mov_b32 s55, {hex(f2u(QSCALE))}
  s_add_u32 s42, s40, {hex(WS_KF)}
  s_add_u32 s43, s42, 65536""")
    for r in range(8): A(f"  v_cvt_pk_bf16_f32 v{208+r}, v{KACC+2*r}, v{KACC+2*r+1}")
    A(f"  buffer_store_dwordx4 v[208:211], v56, s[44:47], s42 offen{SC}\n  buffer_store_dwordx4 v[212:215], v56, s[44:47], s43 offen{SC}")
    for r in range(8): A(f"  v_cvt_pk_bf16_f32 v{216+r}, v{VACC+2*r}, v{VACC+2*r+1}")
    A(f"  s_add_u32 s42, s40, {hex(WS_VF)}")
    A(f"  buffer_store_dwordx4 v[216:219], v57, s[44:47], s42 offen{SC}\n  buffer_store_dwordx4 v[220:223], v57, s[44:47], s42 offen offset:512{SC}")
    for r in range(16): A(f"  v_mul_f32 v{QACC+r}, s55, v{QACC+r}")
    for r in range(8): A(f"  v_cvt_pk_bf16_f32 v{224+r}, v{QACC+2*r}, v{QACC+2*r+1}")
    A(f"  s_add_u32 s42, s40, {hex(WS_QF)}\n  s_add_u32 s43, s42, 65536")
    A(f"  buffer_store_dwordx4 v[224:227], v56, s[44:47], s42 offen{SC}\n  buffer_store_dwordx4 v[228:231], v56, s[44:47], s43 offen{SC}")

Q = 32; O = 64; S = [192, 208]; P = 224; KB = [16, 20, 8, 12]; VB = [24, 232, 240, 248]; M = 240; NB = 4
APART = 65536; TILE_P = 2560; PART_W = 8*TILE_P
ORDER = "e0 p7 e1 e2 e3 Bp L1 c0 e4 e5 c1 e6 e7 c2 e8 W S L2 e9 c3 e10 e11 c4 e12 e13 A c5 e14 e15 c6"
def attn_step(A, kb, jq):
    b = jq & 1; So, Sn = S[b], S[b ^ 1]
    pj = (jq - 1) % 8; pkb = kb if jq > 0 else (kb - 1) % NB
    nj = (jq + 1) % 8; nkb = kb if jq < 7 else (kb + 1) % NB
    fsl = (kb - 1) % NB
    for tok in ORDER.split():
        if tok[0] == 'e':
            i = int(tok[1:]); A(f"  v_exp_f32 v{So+i}, v{So+i}")
        elif tok[0] == 'c':
            i = int(tok[1:]); A(f"  v_cvt_pk_bf16_f32 v{P+i}, v{So+2*i}, v{So+2*i+1}")
        elif tok[0] == 'p':
            i = int(tok[1:]); A(f"  v_cvt_pk_bf16_f32 v{P+i}, v{Sn+2*i}, v{Sn+2*i+1}")
        elif tok == 'S':
            A(f"  {MFMA} {vr(Sn,16)}, {vr(KB[nkb],4)}, {vr(Q+4*nj,4)}, 0")
        elif tok == 'A':
            A(f"  {MFMA} {vr(O+16*jq,16)}, {vr(VB[kb],4)}, {vr(P,4)}, {vr(O+16*jq,16)}")
        elif tok == 'Bp':
            A(f"  {MFMA} {vr(O+16*pj,16)}, {vr(VB[pkb]+4,4)}, {vr(P+4,4)}, {vr(O+16*pj,16)}")
        elif tok == 'L1':
            if jq == 0:
                A(f"  buffer_load_dwordx4 {vr(KB[fsl],4)}, v1, s[20:23], s30 offen{SC}")
            elif jq == 1:
                A(f"  s_add_u32 s30, s30, 1024")
            elif jq == 2 and kb == 0:
                A(f"  s_cmp_eq_u32 s38, {16//NB - 1}")
                A(f"  s_cselect_b32 s30, s39, s30")
        elif tok == 'L2':
            if jq == 0:
                A(f"  s_mov_b64 exec, s[36:37]")
                A(f"  buffer_load_dwordx4 {vr(VB[fsl],4)}, v2, s[20:23], s31 offen{SC}")
                A(f"  buffer_load_dwordx4 {vr(VB[fsl]+4,4)}, v2, s[20:23], s31 offen offset:512{SC}")
                A(f"  s_mov_b64 exec, -1")
            elif jq == 1:
                A(f"  s_add_u32 s31, s31, 1024")
            elif jq == 2 and kb == 0:
                A(f"  s_cmp_eq_u32 s38, {16//NB - 1}")
                A(f"  s_cselect_b32 s31, s39, s31")
        elif tok == 'W':
            if jq == 7: A(f"  s_waitcnt vmcnt({3*(NB-2)})")
        else: raise Exception(tok)
def merge_tile(A, R, T, tile_s, unit_imm=None):
    A(f"""
  s_mul_i32 s40, {tile_s}, {TILE_P}
  s_add_u32 s40, s40, {APART}
  v_add_u32 v{T}, s40, v1
  v_lshrrev_b32 v{T+1}, 1, v1
  v_add_u32 v{T+1}, s40, v{T+1}
  v_add_u32 v{T+2}, {2*PART_W}, v{T}
  v_add_u32 v{T+3}, {2*PART_W}, v{T+1}""")
    for w in range(4):
        a4, a5 = (T, T+1) if w < 2 else (T+2, T+3)
        o = (w % 2)*PART_W
        A(f"  ds_read_b64 {vr(R+10*w+8,2)}, v{a5} offset:{o+2048}")
    for w in range(4):
        a4, a5 = (T, T+1) if w < 2 else (T+2, T+3)
        o = (w % 2)*PART_W
        A(f"  ds_read_b128 {vr(R+10*w,4)}, v{a4} offset:{o}")
        A(f"  ds_read_b128 {vr(R+10*w+4,4)}, v{a4} offset:{o+1024}")
    A(f"""
  s_lshl_b32 s41, s29, 3
  s_add_u32 s41, s41, {tile_s}
  s_lshl_b32 s41, s41, 5
  s_add_u32 s41, s41, s28                      ; *32 + head
  s_lshl_b32 s41, s41, 10
  s_add_u32 s41, s41, {hex(WS_OF)}
  s_waitcnt lgkmcnt(8)""")
    A(f"  v_max3_f32 v{T}, v{R+9}, v{R+19}, v{R+29}")
    A(f"  v_max_f32 v{T}, v{T}, v{R+39}")
    for w in range(4): A(f"  v_sub_f32 v{T+1+w}, v{R+10*w+9}, v{T}")
    for w in range(4): A(f"  v_exp_f32 v{T+1+w}, v{T+1+w}")
    A("  s_nop 0")
    A(f"  v_mul_f32 v{T+5}, v{T+1}, v{R+8}")
    for w in range(1, 4): A(f"  v_fmac_f32 v{T+5}, v{T+1+w}, v{R+10*w+8}")
    A(f"  v_rcp_f32 v{T+5}, v{T+5}")
    A("  s_nop 0")
    for w in range(4): A(f"  v_mul_f32 v{T+1+w}, v{T+5}, v{T+1+w}")
    A("  s_waitcnt lgkmcnt(0)")
    for r in range(8):
        A(f"  v_mul_f32 v{T+6+r}, v{T+1}, v{R+r}")
        for w in range(1, 4): A(f"  v_fmac_f32 v{T+6+r}, v{T+1+w}, v{R+10*w+r}")
    for r in range(4): A(f"  v_cvt_pk_bf16_f32 v{R+r}, v{T+6+2*r}, v{T+7+2*r}")
    A(f"  buffer_store_dwordx4 {vr(R,4)}, v1, s[20:23], s41 offen{SC}")
def gen_attn(A, name):
    srd(A, 20, 8, WS_TOTAL)
    A(f"""
  s_mul_i32 s3, s3, 1664525
  s_add_u32 s3, s3, 1013904223
  s_lshr_b32 s28, s2, 3
  s_and_b32 s28, s28, 3
  s_lshl_b32 s29, s25, 2
  s_add_u32 s28, s28, s29                      ; head
  s_lshr_b32 s29, s2, 5                        ; qb
  v_lshlrev_b32 v1, 4, v0                      ; lane*16
  v_and_b32 v2, 15, v0
  v_lshlrev_b32 v2, 4, v2
  v_lshrrev_b32 v3, 5, v0
  v_lshl_add_u32 v2, v3, 8, v2                 ; hh*256 + d*16
  s_mov_b32 s36, 0x0000ffff
  s_mov_b32 s37, 0x0000ffff
  s_mov_b32 s39, 0x40000000
  s_lshl_b32 s33, s28, 16                      ; head*64*1024
  s_lshl_b32 s34, s29, 13                      ; qb*8*1024
  s_add_u32 s34, s34, s33
  s_add_u32 s34, s34, {hex(WS_QF)}
  s_lshl_b32 s35, s24, 14
  s_add_u32 s35, s35, s33
  s_add_u32 s32, s35, {hex(WS_KF)}
  s_add_u32 s35, s35, {hex(WS_VF)}             ; V base
  v_mov_b32 v4, 0x3f803f80
  v_and_b32 v5, 27, v0
  v_cmp_eq_u32 vcc, 16, v5
  v_mov_b32 v5, 0
  s_nop 0
  v_cndmask_b32 v4, v5, v4, vcc""")
    for b in range(NB):
        for r in range(8): A(f"  v_mov_b32 v{VB[b]+r}, v4")
    A(f"  v_mov_b32 v{S[1]+14}, 0\n  v_mov_b32 v{S[1]+15}, 0")
    A(f"""
  v_mov_b32 v6, {MISC+4}
  v_mov_b32 v7, 1
  s_waitcnt vmcnt(0)""")
    if os.environ.get("HST"): stamp(A, 3)
    A(f"""
  s_mov_b64 exec, 1
  ds_add_u32 v6, v7
  s_mov_b64 exec, -1
  s_cmp_lg_u32 s24, 0
  s_cbranch_scc1 {name}_a_wait
{name}_a_cnt:
  ds_read_b32 v8, v6
  s_waitcnt lgkmcnt(0)
  v_readfirstlane_b32 s30, v8
  s_nop 0
  s_cmp_ge_u32 s30, 4
  s_cbranch_scc0 {name}_a_cnt
  s_lshl_b32 s30, s62, 5
  s_add_u32 s30, s30, s63
  s_lshl_b32 s30, s30, 6
  s_add_u32 s30, s30, {hex(WS_FQ)}
  v_mov_b32 v8, s30
  v_mov_b32 v9, s3
  s_mov_b64 exec, 1
  buffer_store_dword v9, v8, s[20:23], 0 offen sc1
  s_mov_b64 exec, -1""")
    if os.environ.get("HST"): stamp(A, 6)
    A(f"""
  s_lshr_b32 s30, s28, 2
  s_lshl_b32 s30, s30, 5
  v_and_b32 v8, 31, v0
  v_add_u32 v8, s30, v8
  v_lshlrev_b32 v8, 6, v8
  v_add_u32 v8, {hex(WS_FQ)}, v8""")
    poll(A, name, 8, 9, "A")
    A(f"""
  ds_write_b32 v6, v7 offset:4
  s_branch {name}_a_go
{name}_a_wait:
  ds_read_b32 v8, v6 offset:4
  s_waitcnt lgkmcnt(0)
  v_readfirstlane_b32 s30, v8
  s_nop 0
  s_cmp_lg_u32 s30, 0
  s_cbranch_scc1 {name}_a_go
  s_sleep 1
  s_branch {name}_a_wait
{name}_a_go:""")
    if not os.environ.get("CHST"): stamp(A, 4)
    A(f"""
  s_setprio {APRIO}""")
    for _ in range(int(os.environ.get("ADELAY", "0"))): A("  s_sleep 40")
    A(f"""
  buffer_load_dwordx4 {vr(KB[0],4)}, v1, s[20:23], s32 offen{SC}
  buffer_load_dwordx4 {vr(Q,4)}, v1, s[20:23], s34 offen{SC}
  s_mov_b64 exec, s[36:37]
  buffer_load_dwordx4 {vr(VB[0],4)}, v2, s[20:23], s35 offen{SC}
  buffer_load_dwordx4 {vr(VB[0]+4,4)}, v2, s[20:23], s35 offen offset:512{SC}
  s_mov_b64 exec, -1""")
    for j in range(1, 8):
        if j == 4: A("  s_add_u32 s34, s34, 4096")
        A(f"  buffer_load_dwordx4 {vr(Q+4*j,4)}, v1, s[20:23], s34 offen" + (f" offset:{(j%4)*1024}" if j % 4 else "") + SC)
    for t in range(1, NB-1):
        A(f"  buffer_load_dwordx4 {vr(KB[t],4)}, v1, s[20:23], s32 offen offset:{t*1024}{SC}")
        A(f"  s_mov_b64 exec, s[36:37]")
        A(f"  buffer_load_dwordx4 {vr(VB[t],4)}, v2, s[20:23], s35 offen offset:{t*1024}{SC}")
        A(f"  buffer_load_dwordx4 {vr(VB[t]+4,4)}, v2, s[20:23], s35 offen offset:{t*1024+512}{SC}")
        A(f"  s_mov_b64 exec, -1")
    A(f"""
  s_add_u32 s30, s32, {(NB-1)*1024}
  s_add_u32 s31, s35, {(NB-1)*1024}""")
    for r in range(8): A(f"  v_mov_b32 v{P+r}, 0")
    A("  s_nop 1")
    for j in range(8): A(f"  {MFMA} {vr(O+16*j,16)}, {vr(P,4)}, {vr(P+4,4)}, 0")
    A(f"  s_waitcnt vmcnt({3*(NB-2)})")
    if not os.environ.get("CHST"): stamp(A, 5)
    A(f"""
  {MFMA} {vr(S[0],16)}, {vr(KB[0],4)}, {vr(Q,4)}, 0
  s_mov_b32 s38, 0
  s_nop 7
  s_nop 3
.p2align 6
{name}_aloop:""")
    for kb in range(NB):
        for jq in range(8): attn_step(A, kb, jq)
    A(f"""
  s_add_u32 s38, s38, 1
  s_cmp_lt_u32 s38, {16//NB}
  s_cbranch_scc1 {name}_aloop
  v_cvt_pk_bf16_f32 v{P+7}, v{S[1]+14}, v{S[1]+15}
  s_nop 1
  {MFMA} {vr(O+16*7,16)}, {vr(VB[NB-1]+4,4)}, {vr(P+4,4)}, {vr(O+16*7,16)}
  s_waitcnt vmcnt(0)
  v_mov_b32 v4, 0
  v_mov_b32 v5, 0
  v_mov_b32 v6, 0
  v_mov_b32 v7, 0""")
    if not os.environ.get("CHST") and not os.environ.get("HST"): stamp(A, 6)
    for j in range(7):
        for r in range(0, 8, 2):
            A(f"  v_pk_fma_f32 v[4:5], {vr(O+16*j+r,2)}, v[6:7], v[4:5]")
    A(f"""
  s_mov_b32 s40, 0x1f800000                    ; 2^-64
  s_mov_b32 s41, 0x5f800000                    ; 2^64
  s_mov_b64 s[42:43], exec""")
    for j in range(8):
        if j == 7:
            for r in range(0, 8, 2):
                A(f"  v_pk_fma_f32 v[4:5], {vr(O+16*j+r,2)}, v[6:7], v[4:5]")
        A(f"""  v_cmp_le_f32 vcc, s40, v{O+16*j+8}
  s_and_b64 s[42:43], s[42:43], vcc
  v_cmp_ge_f32 vcc, s41, v{O+16*j+8}
  s_and_b64 s[42:43], s[42:43], vcc""")
    A(f"""
  v_add_f32 v4, v4, v5
  v_cmp_eq_f32 vcc, v4, v4
  s_and_b64 s[42:43], s[42:43], vcc
  s_cmp_eq_u64 s[42:43], exec
  s_cbranch_scc0 {name}_fallback""")
    for r in range(8): A(f"  v_mov_b32 v{M+r}, 0")
    A(f"  s_branch {name}_adone\n{name}_fallback:")
    for r in range(8): A(f"  v_mov_b32 v{M+r}, 0xff800000")
    A(f"""
  s_mov_b32 s38, 0
  s_mov_b32 s30, s32
{name}_fb1:
  buffer_load_dwordx4 {vr(KB[0],4)}, v1, s[20:23], s30 offen{SC}
  s_waitcnt vmcnt(0)""")
    for j in range(8):
        A(f"  {MFMA} {vr(S[0],16)}, {vr(KB[0],4)}, {vr(Q+4*j,4)}, 0")
        A("  s_nop 7\n  s_nop 7")
        for r in range(0, 16, 2):
            A(f"  v_max3_f32 v{M+j}, v{S[0]+r}, v{S[0]+r+1}, v{M+j}")
    A(f"""
  s_add_u32 s30, s30, 1024
  s_add_u32 s38, s38, 1
  s_cmp_lt_u32 s38, 16
  s_cbranch_scc1 {name}_fb1""")
    for j in range(8):
        A(f"  v_mov_b32 v4, v{M+j}\n  s_nop 1\n  v_permlane32_swap_b32 v4, v{M+j}\n  s_nop 1\n  v_max_f32 v{M+j}, v4, v{M+j}")
    for r in range(128): A(f"  v_mov_b32 v{O+r}, 0")
    A(f"""
  s_mov_b32 s38, 0
  s_mov_b32 s30, s32
  s_mov_b32 s31, s35
{name}_fb2:
  buffer_load_dwordx4 {vr(KB[0],4)}, v1, s[20:23], s30 offen{SC}
  s_mov_b64 exec, s[36:37]
  buffer_load_dwordx4 {vr(VB[0],4)}, v2, s[20:23], s31 offen{SC}
  buffer_load_dwordx4 {vr(VB[0]+4,4)}, v2, s[20:23], s31 offen offset:512{SC}
  s_mov_b64 exec, -1
  s_waitcnt vmcnt(0)""")
    for j in range(8):
        A(f"  {MFMA} {vr(S[0],16)}, {vr(KB[0],4)}, {vr(Q+4*j,4)}, 0")
        A("  s_nop 7\n  s_nop 7")
        for r in range(16): A(f"  v_sub_f32 v{S[0]+r}, v{S[0]+r}, v{M+j}")
        for r in range(16): A(f"  v_exp_f32 v{S[0]+r}, v{S[0]+r}")
        A("  s_nop 0")
        for r in range(8): A(f"  v_cvt_pk_bf16_f32 v{P+r}, v{S[0]+2*r}, v{S[0]+2*r+1}")
        A("  s_nop 1")
        A(f"  {MFMA} {vr(O+16*j,16)}, {vr(VB[0],4)}, {vr(P,4)}, {vr(O+16*j,16)}")
        A(f"  {MFMA} {vr(O+16*j,16)}, {vr(VB[0]+4,4)}, {vr(P+4,4)}, {vr(O+16*j,16)}")
    A(f"""
  s_add_u32 s30, s30, 1024
  s_add_u32 s31, s31, 1024
  s_add_u32 s38, s38, 1
  s_cmp_lt_u32 s38, 16
  s_cbranch_scc1 {name}_fb2
  s_nop 7
  s_nop 7
{name}_adone:
  s_mul_i32 s40, s24, {PART_W}
  s_add_u32 s40, s40, {APART}
  v_add_u32 v4, s40, v1
  v_lshlrev_b32 v5, 3, v0
  v_add_u32 v5, s40, v5""")
    for j in range(8):
        A(f"  v_mov_b32 v{O+16*j+9}, v{M+j}")
        A(f"  ds_write_b128 v4, {vr(O+16*j,4)} offset:{j*TILE_P}")
        A(f"  ds_write_b128 v4, {vr(O+16*j+4,4)} offset:{j*TILE_P+1024}")
        A(f"  ds_write_b64 v5, {vr(O+16*j+8,2)} offset:{j*TILE_P+2048}")
    A(f"""
  s_waitcnt lgkmcnt(0)
  s_barrier""")
    merge_tile(A, 64, 16, "s24")
    A("  s_waitcnt vmcnt(0)\n  s_barrier")
    stamp_flush(A, 0, "s81", 8)
    A("  s_endpgm")

def gen_g(A, name):
    ACCB = 64; ACCA = 128; ACT = 192; WF = [16, 24]; D = 8
    vq = VmQ()
    srd(A, 20, 8, WS_TOTAL)
    srd(A, 12, 56, 1376*1024)
    A(f"""
  s_lshr_b32 s26, s25, 1
  s_lshl_b32 s26, s26, 3
  s_lshr_b32 s28, s2, 3
  s_and_b32 s28, s28, 7
  s_add_u32 s26, s26, s28                      ; tb
  s_and_b32 s28, s25, 1
  s_lshl_b32 s28, s28, 2
  s_lshr_b32 s30, s2, 6
  s_add_u32 s28, s28, s30                      ; nb
  s_mul_i32 s33, s24, 22
  s_cmp_eq_u32 s24, 3
  s_cselect_b32 s30, 1, 0
  s_sub_u32 s33, s33, s30
  s_cmp_ge_u32 s24, 2
  s_cselect_b32 s34, 21, 22                    ; n steps
  s_lshl_b32 s35, s33, 14
  s_lshl_b32 s36, s28, 7
  s_add_u32 s35, s35, s36                      ; W soffset
  s_mul_i32 s36, s26, 172                      ; 2*tb*86
  s_add_u32 s36, s36, s33
  s_lshl_b32 s36, s36, 10
  s_add_u32 s36, s36, {hex(WS_HF)}
  s_mov_b32 s37, {86*1024}
  s_lshl_b32 s38, s24, 14
  s_mov_b32 s42, 0x40000000
  v_lshrrev_b32 v2, 3, v0
  v_lshrrev_b32 v3, 4, v0
  v_and_b32 v3, 1, v3
  v_lshlrev_b32 v3, 2, v3
  v_and_b32 v5, 7, v0
  v_xor_b32 v3, v3, v5
  v_lshlrev_b32 v3, 4, v3
  v_lshl_add_u32 v2, v2, 10, v3
  v_lshlrev_b32 v3, 4, v0                      ; v3 = lane*16
  v_lshrrev_b32 v4, 5, v0
  v_and_b32 v5, 15, v0
  v_lshrrev_b32 v6, 2, v5
  v_lshl_add_u32 v4, v4, 2, v6                 ; row
  v_lshrrev_b32 v7, 1, v6
  v_and_b32 v7, 1, v7                          ; (row>>1)&1
  v_lshlrev_b32 v4, 7, v4
  v_lshl_add_u32 v4, v7, 6, v4
  v_lshrrev_b32 v6, 4, v0
  v_and_b32 v6, 1, v6
  v_lshl_add_u32 v4, v6, 5, v4
  v_and_b32 v6, 3, v5
  v_lshl_add_u32 v4, v6, 3, v4
  v_xor_b32 v7, 64, v4
  v_add_u32 v4, s38, v4
  v_add_u32 v7, s38, v7
""")
    def issue_w(s, wso, masked):
        slot = s % D
        if masked:
            A(f"  s_cmp_gt_u32 s34, {s}\n  s_cselect_b32 s40, {wso}, s42"); w = "s40"
        else: w = wso
        A(f"  s_add_u32 m0, s38, {slot*2048}")
        A(f"  s_add_u32 s44, {w}, 8192")
        A(f"  buffer_load_dwordx4 v2, s[12:15], {w} offen lds")
        A(f"  s_add_u32 m0, s38, {slot*2048+1024}")
        A(f"  s_add_u32 {wso}, {wso}, 16384")
        A(f"  buffer_load_dwordx4 v2, s[12:15], s44 offen lds")
        vq.issue(("w", s)); vq.issue(("w", s))
    def issue_a(s, aso, masked):
        slot = s % D
        if masked:
            A(f"  s_cmp_gt_u32 s34, {s}\n  s_cselect_b32 s41, {aso}, s42"); a = "s41"
        else: a = aso
        A(f"  s_add_u32 s43, {a}, s37")
        A(f"  buffer_load_dwordx4 {vr(ACT+8*slot,4)}, v3, s[20:23], {a} offen{SC}")
        A(f"  buffer_load_dwordx4 {vr(ACT+8*slot+4,4)}, v3, s[20:23], s43 offen{SC}")
        A(f"  s_add_u32 {aso}, {aso}, 1024")
        vq.issue(("a", s)); vq.issue(("a", s))
    def trreads(s, buf):
        slot = s % D
        for t in range(2):
            A(f"  ds_read_b64_tr_b16 {vr(WF[buf]+4*t,2)}, v{4 if t == 0 else 7} offset:{slot*2048}")
            A(f"  ds_read_b64_tr_b16 {vr(WF[buf]+4*t+2,2)}, v{4 if t == 0 else 7} offset:{slot*2048 + 1024}")
    def run_steps(nstep, acc, wso, aso, masked, pre_w, pre_a):
        iw, ia = pre_w, pre_a
        vq.wait(A, {("w", 0)})
        trreads(0, 0)
        for s in range(nstep):
            slot = s % D; b = s & 1
            if s + 1 < nstep:
                vq.wait(A, {("w", s+1), ("a", s)})
                trreads(s + 1, b ^ 1)
                A("  s_waitcnt lgkmcnt(4)")
            else:
                vq.wait(A, {("a", s)})
                A("  s_waitcnt lgkmcnt(0)")
            for t in range(2):
                for u in range(2):
                    a = vr(acc+16*(2*t+u), 16)
                    A(f"  {MFMA} {a}, {vr(WF[b]+4*t,4)}, {vr(ACT+8*slot+4*u,4)}, {a if s > 0 else 0}")
            if iw < nstep: issue_w(iw, wso, masked); iw += 1
            if ia < nstep: issue_a(ia, aso, masked); ia += 1
    for s in range(D): issue_w(s, "s35", True)
    A(f"""
  s_lshr_b32 s30, s26, 1
  s_lshl_b32 s30, s30, 4
  v_and_b32 v5, 15, v0
  v_add_u32 v5, s30, v5
  v_lshlrev_b32 v5, 6, v5
  v_add_u32 v5, {hex(WS_F1)}, v5""")
    poll(A, name, 5, 6, "H")
    vq.drain()
    for _ in range(int(os.environ.get("GDELAY", "0"))): A("  s_sleep 40")
    if not os.environ.get("CHST"): stamp(A, 4)
    A(f"""
  v_and_b32 v5, 31, v0
  v_lshlrev_b32 v5, 2, v5
  s_lshl_b32 s39, s26, 8
  s_add_u32 s39, s39, {hex(WS_G)}
  buffer_load_dword v8, v5, s[20:23], s39 offen sc1
  buffer_load_dword v9, v5, s[20:23], s39 offen offset:128 sc1""")
    vq.issue("g"); vq.issue("g")
    for s in range(D): issue_a(s, "s36", True)
    A(f"  s_setprio {GPRIO}")
    vq.q = [("w", s) for s in range(D)] + vq.q
    if os.environ.get("GSKIP"):
        A("  s_waitcnt vmcnt(0)"); vq.drain()
    else:
        run_steps(22, ACCB, "s35", "s36", True, D, D)
    if not os.environ.get("CHST"): stamp(A, 5)
    A("  s_setprio 2\n  s_nop 7\n  v_sub_f32 v10, 1.0, v8\n  v_sub_f32 v11, 1.0, v9\n  s_nop 7")
    for t in range(2):
        for u in range(2):
            for r in range(16):
                k = 16*(2*t+u)+r
                A(f"  v_mul_f32 v{ACCB+k}, v{10+u}, v{ACCB+k}")
    srd(A, 12, 58, 512*1024)
    A(f"""
  s_setprio 2
  s_lshl_b32 s35, s24, 17
  s_lshl_b32 s36, s28, 7
  s_add_u32 s35, s35, s36
  s_lshl_b32 s36, s26, 6                       ; (2tb)*32
  s_lshl_b32 s33, s24, 3
  s_add_u32 s36, s36, s33
  s_lshl_b32 s36, s36, 10
  s_add_u32 s36, s36, {hex(WS_OF)}
  s_mov_b32 s37, {32*1024}""")
    vq.drain()
    A("  s_waitcnt vmcnt(0)")
    for s in range(8): issue_w(s, "s35", False)
    A(f"""
  s_lshr_b32 s30, s2, 3
  s_and_b32 s30, s30, 3
  s_lshl_b32 s31, s25, 2
  s_mov_b32 s46, s28
  s_mov_b32 s47, s29
  s_add_u32 s28, s30, s31                      ; head
  s_lshr_b32 s29, s2, 5                        ; qb
  s_add_u32 s45, s24, 4
  v_mov_b32 v1, v3
  s_barrier                                    ; X""")
    merge_tile(A, 192, 32, "s45")
    A(f"""
  s_mov_b32 s28, s46
  s_mov_b32 s29, s47
  s_waitcnt vmcnt(0)
  s_barrier                                    ; Y
  s_cmp_lg_u32 s24, 0
  s_cbranch_scc1 {name}_g_nopost2
  s_lshr_b32 s30, s2, 3
  s_and_b32 s30, s30, 3
  s_lshl_b32 s31, s25, 2
  s_add_u32 s30, s30, s31                      ; head
  s_lshr_b32 s31, s2, 5                        ; qb
  s_lshl_b32 s31, s31, 5
  s_add_u32 s30, s30, s31
  s_lshl_b32 s30, s30, 6
  s_add_u32 s30, s30, {hex(WS_FO)}
  v_mov_b32 v5, s30
  v_mov_b32 v6, s3
  s_mov_b64 exec, 1
  buffer_store_dword v6, v5, s[20:23], 0 offen sc1
  s_mov_b64 exec, -1
{name}_g_nopost2:
  s_lshr_b32 s30, s26, 2
  s_lshl_b32 s30, s30, 5
  s_lshl_b32 s31, s24, 3
  s_add_u32 s30, s30, s31
  v_and_b32 v5, 7, v0
  v_add_u32 v5, s30, v5
  v_lshlrev_b32 v5, 6, v5
  v_add_u32 v5, {hex(WS_FO)}, v5""")
    poll(A, name, 5, 6, "O")
    vq.drain()
    if not os.environ.get("CHST"): stamp(A, 6)
    for s in range(8): issue_a(s, "s36", False)
    vq.q = [("w", s) for s in range(8)] + vq.q
    run_steps(8, ACCA, "s35", "s36", False, 8, 8)
    A("  s_nop 7\n  s_nop 7")
    for t in range(2):
        for u in range(2):
            for r in range(16):
                k = 16*(2*t+u)+r
                A(f"  v_fmac_f32 v{ACCB+k}, v{8+u}, v{ACCA+k}")
    A("  v_add_u32 v5, s38, v3")
    for tile in range(4):
        for q in range(4):
            A(f"  ds_write_b128 v5, {vr(ACCB+16*tile+4*q,4)} offset:{tile*4096+q*1024}")
    A(f"""
  s_waitcnt lgkmcnt(0)
  s_barrier
  s_lshl_b32 s40, s24, 12
  v_add_u32 v5, s40, v3""")
    for w in range(4):
        for q in range(4):
            A(f"  ds_read_b128 {vr(64+16*w+4*q,4)}, v5 offset:{w*16384+q*1024}")
    A("  s_waitcnt lgkmcnt(0)")
    for r in range(16):
        for w in range(1, 4): A(f"  v_add_f32 v{64+r}, v{64+r}, v{64+16*w+r}")
    for r in range(8): A(f"  v_cvt_pk_bf16_f32 v{16+r}, v{64+2*r}, v{65+2*r}")
    A(f"  s_load_dwordx2 s[60:61], s[0:1], {KA_OUT}\n  s_waitcnt lgkmcnt(0)")
    srd(A, 16, 60, 2048*1024)
    A(f"""
  s_and_b32 s41, s24, 1
  s_lshr_b32 s40, s24, 1
  s_lshl_b32 s42, s26, 6
  s_lshl_b32 s41, s41, 5
  s_add_u32 s42, s42, s41
  s_lshl_b32 s42, s42, 10
  s_lshl_b32 s43, s28, 7
  s_lshl_b32 s40, s40, 6
  s_add_u32 s43, s43, s40
  s_add_u32 s42, s42, s43
  v_and_b32 v5, 31, v0
  v_lshlrev_b32 v5, 10, v5
  v_lshrrev_b32 v6, 5, v0
  v_lshl_add_u32 v5, v6, 4, v5
  v_permlane32_swap_b32 v16, v18
  v_permlane32_swap_b32 v17, v19
  v_permlane32_swap_b32 v20, v22
  v_permlane32_swap_b32 v21, v23
  s_nop 1
  buffer_store_dwordx4 v[16:19], v5, s[16:19], s42 offen
  buffer_store_dwordx4 v[20:23], v5, s[16:19], s42 offen offset:32
  s_or_b32 s30, s2, s24
  s_cmp_lg_u32 s30, 0
  s_cbranch_scc1 {name}_g_noepoch
  v_mov_b32 v5, {WS_EPOCH}
  v_mov_b32 v6, s3
  s_mov_b64 exec, 1
  buffer_store_dword v6, v5, s[20:23], 0 offen
  s_mov_b64 exec, -1
{name}_g_noepoch:""")
    stamp_flush(A, 0, "s81", 8)
    A("  s_endpgm")

def gen_z(A, name=NAME):
    kernel_begin(A, name)
    stamp_init(A)
    A(f"""
  s_cmp_ge_u32 s2, 256
  s_cbranch_scc1 {name}_end
  s_load_dwordx4 s[4:7], s[0:1], {KA_AX}       ; A_x, wqkv
  s_load_dwordx4 s[52:55], s[0:1], {KA_WG}
  s_load_dwordx2 s[8:9], s[0:1], {KA_WS}
  s_load_dwordx2 s[10:11], s[0:1], {KA_GW}
  s_load_dwordx2 s[56:57], s[0:1], {KA_WD}
  s_load_dwordx2 s[58:59], s[0:1], {KA_WO}
  v_lshrrev_b32 v1, 6, v0
  v_and_b32 v0, 63, v0
  s_and_b32 s25, s2, 7
  s_lshr_b32 s27, s2, 3
  v_readfirstlane_b32 s24, v1
  s_and_b32 s26, s25, 3
  s_lshl_b32 s26, s26, 2
  s_and_b32 s27, s27, 3
  s_add_u32 s26, s26, s27                      ; rb = (j&3)*4 + ((c>>3)&3)
  s_lshr_b32 s27, s25, 2
  s_lshl_b32 s27, s27, 3
  s_lshr_b32 s28, s2, 5
  s_xor_b32 s28, s28, {int(os.environ.get("CGX", "0"))}
  s_add_u32 s27, s27, s28                      ; cg = (j>>2)*8 + (c>>5)
  s_lshl_b32 s29, s26, 4
  s_add_u32 s29, s29, s27
  s_and_b32 s63, s25, 3
  s_lshl_b32 s63, s63, 3
  s_lshr_b32 s62, s2, 3
  s_and_b32 s62, s62, 7
  s_add_u32 s63, s63, s62                      ; rb1 = (j&3)*8 + ((c>>3)&7)
  s_lshr_b32 s62, s25, 2
  s_lshl_b32 s62, s62, 2
  s_lshr_b32 s30, s2, 6
  s_add_u32 s62, s62, s30                      ; cq = (j>>2)*4 + (c>>6)
  s_waitcnt lgkmcnt(0)
  s_load_dword s3, s[8:9], {WS_EPOCH}""")
    if asmlib.STAMPS: A("  s_mov_b32 s81, s24")
    A(f"""
  s_cmp_lt_u32 s24, 4
  s_cbranch_scc1 {name}_compute""")
    srd(A, 20, 8, WS_TOTAL)
    gen_loader(A, name)
    gen_g(A, name)
    A(f"{name}_compute:")
    A("  s_waitcnt lgkmcnt(0)")
    gen_p1(A, name)
    gen_attn(A, name)
    A(f"{name}_end:\n  s_endpgm")
    return kernel_desc(name, 256, 96)
```
